```python
import torch

def _softmax(x, axis=-1):
    return torch.softmax(x, dim=axis)
def _gelu(x):
    return torch.nn.functional.gelu(x, approximate="tanh")
def _silu(x):
    return torch.nn.functional.silu(x)
def _sigmoid(x):
    return torch.sigmoid(x)
def _layernorm(x, axis=-1, eps=1e-5):
    m = x.mean(dim=axis, keepdim=True)
    v = x.var(dim=axis, keepdim=True, unbiased=False)
    return (x - m) / torch.sqrt(v + eps)
def _scatter_add(tgt, idx, src, axis=0):
    return tgt.clone().index_add_(axis, idx, src)
def _segment_sum(src, seg, n):
    out = torch.zeros((n,) + src.shape[1:], dtype=src.dtype)
    return out.index_add_(0, seg, src)
def _pad(x, pw):
    flat = tuple(v for pair in reversed(pw) for v in pair)
    return torch.nn.functional.pad(x, flat)

kernel_name = 'concat_heads__mha_block_cached__mha_block_cached__near_ridge'

def setup_inputs():

    _w = (lambda a: (lambda t: t.to(torch.bfloat16) if t.is_floating_point() else t)(torch.as_tensor(a)))
    def _A_setup():
        B, Sq, D = 16, 192, 640
        H, Sk, Dh = 32, 512, 128
        return {
            "x": _w((lambda *s: torch.randn(*s, dtype=torch.bfloat16) * 0.8)(B, Sq, D)),
            "k_cache": _w((lambda *s: torch.randn(*s, dtype=torch.bfloat16) * 0.8)(B, H, Sk, Dh)),
            "v_cache": _w((lambda *s: torch.randn(*s, dtype=torch.bfloat16) * 0.05)(B, H, Sk, Dh)),
            "wq": _w((lambda *s: torch.randn(*s, dtype=torch.bfloat16) * 0.8)(D, H * Dh) * (D ** -0.5)),
            "wo": _w((lambda *s: torch.randn(*s, dtype=torch.bfloat16) * 0.05)(H * Dh, D) * ((H * Dh) ** -0.5)),
        }
    _A_in = _A_setup()

    def _B_setup():
        B, Sq, D = 16, 192, 640
        H, Sk, Dh = 32, 512, 128
        return {
            "x": _w((lambda *s: torch.randn(*s, dtype=torch.bfloat16) * 0.8)(B, Sq, D)),
            "k_cache": _w((lambda *s: torch.randn(*s, dtype=torch.bfloat16) * 0.8)(B, H, Sk, Dh)),
            "v_cache": _w((lambda *s: torch.randn(*s, dtype=torch.bfloat16) * 0.05)(B, H, Sk, Dh)),
            "wq": _w((lambda *s: torch.randn(*s, dtype=torch.bfloat16) * 0.8)(D, H * Dh) * (D ** -0.5)),
            "wo": _w((lambda *s: torch.randn(*s, dtype=torch.bfloat16) * 0.05)(H * Dh, D) * ((H * Dh) ** -0.5)),
        }
    _B_in = _B_setup()

    return {
        "A_x": _A_in["x"],
        "A_k_cache": _A_in["k_cache"],
        "A_v_cache": _A_in["v_cache"],
        "A_wq": _A_in["wq"],
        "A_wo": _A_in["wo"],
        "B_x": _B_in["x"],
        "B_k_cache": _B_in["k_cache"],
        "B_v_cache": _B_in["v_cache"],
        "B_wq": _B_in["wq"],
        "B_wo": _B_in["wo"],
    }

def reference(A_x, A_k_cache, A_v_cache, A_wq, A_wo, B_x, B_k_cache, B_v_cache, B_wq, B_wo):
    def _A_ref(x, k_cache, v_cache, wq, wo):
        B, Sq, D = x.shape
        H, Dh = 32, 128
        q = (lambda x, *d: x.permute(*d))((x @ wq).reshape(B, Sq, H, Dh), 0, 2, 1, 3)
        scores = torch.einsum("bhqd,bhkd->bhqk", q, k_cache) * (Dh ** -0.5)
        p = _softmax(scores, axis=-1)
        o = torch.einsum("bhqk,bhkd->bhqd", p, v_cache)
        return (lambda x, *d: x.permute(*d))(o, 0, 2, 1, 3).reshape(B, Sq, H * Dh) @ wo

    def _B_ref(x, k_cache, v_cache, wq, wo):
        B, Sq, D = x.shape
        H, Dh = 32, 128
        q = (lambda x, *d: x.permute(*d))((x @ wq).reshape(B, Sq, H, Dh), 0, 2, 1, 3)
        scores = torch.einsum("bhqd,bhkd->bhqk", q, k_cache) * (Dh ** -0.5)
        p = _softmax(scores, axis=-1)
        o = torch.einsum("bhqk,bhkd->bhqd", p, v_cache)
        return (lambda x, *d: x.permute(*d))(o, 0, 2, 1, 3).reshape(B, Sq, H * Dh) @ wo

    a = _A_ref(A_x, A_k_cache, A_v_cache, A_wq, A_wo)
    b = _B_ref(B_x, B_k_cache, B_v_cache, B_wq, B_wo)
    return torch.concatenate([a, b], axis=-1)
```

```python
import re

REG_RE = re.compile(r'^(-|abs\()?([vas])(\d+)\)?$')
RNG_RE = re.compile(r'^(-)?([vas])\[(\d+):(\d+)\]$')

def regs_of(tok):
    tok = tok.strip()
    m = REG_RE.match(tok)
    if m: return [(m.group(2), int(m.group(3)))]
    m = RNG_RE.match(tok)
    if m: return [(m.group(2), i) for i in range(int(m.group(3)), int(m.group(4)) + 1)]
    if tok in ('m0', 'vcc', 'exec', 'scc'): return [(tok, 0)]
    if tok in ('vcc_lo', 'vcc_hi'): return [('vcc', 0)]
    return []

TRANS = ('v_exp_f32', 'v_rcp_f32', 'v_log_f32', 'v_rsq_f32', 'v_sqrt_f32')

class I:
    __slots__ = ('text', 'kind', 'rd', 'wr', 'tag', 'src', 'need', 'mn', 'states', 'srcC', 'AB', 'label')
    def __init__(self, text, tag=None, src=None):
        self.text = text; self.tag = tag; self.src = src; self.need = None; self.label = None
        self.states = 1; self.srcC = []; self.AB = []
        t = text.split(';')[0].strip()
        if t.endswith(':') or t.startswith('.') or t == '':
            self.kind = 'pseudo'; self.rd = []; self.wr = []; self.mn = ''; self.states = 0; return
        parts = t.split(None, 1)
        mn = parts[0]; self.mn = mn
        ops = []
        if len(parts) > 1:
            ops = [o.strip() for o in parts[1].split(',')]
            last = ops[-1].split()
            mods = last[1:] if last else []
            if last: ops[-1] = last[0]
        else:
            mods = []
        R = lambda k: regs_of(ops[k]) if k < len(ops) else []
        allr = lambda a: [x for k in range(a, len(ops)) for x in R(k)]
        rd = []; wr = []
        if mn.startswith('v_mfma'):
            self.kind = 'mfma'; wr = R(0); self.AB = R(1) + R(2); self.srcC = R(3); rd = self.AB + self.srcC
        elif mn.startswith('ds_read'):
            self.kind = 'ds'; wr = R(0); rd = R(1)
        elif mn.startswith('ds_write'):
            self.kind = 'dsw'; rd = allr(0)
        elif mn.startswith('buffer_load') or mn.startswith('global_load'):
            if 'lds' in mods:
                self.kind = 'dma'; rd = allr(0) + [('m0', 0)]
            else:
                self.kind = 'vld'; wr = R(0); rd = allr(1)
                if 'd16' in mn: rd += R(0)
        elif mn.startswith('buffer_store') or mn.startswith('global_store') or mn.startswith('buffer_atomic') or mn.startswith('global_atomic'):
            self.kind = 'vst'; rd = allr(0)
        elif mn.startswith('s_load'):
            self.kind = 'smem'; wr = R(0); rd = allr(1)
        elif mn in ('s_memtime', 's_memrealtime'):
            self.kind = 'smem'; wr = R(0)
        elif mn == 's_waitcnt':
            self.kind = 'wait'
        elif mn == 's_barrier':
            self.kind = 'barrier'
        elif mn == 's_nop':
            self.kind = 'nop'; self.states = int(ops[0], 0) + 1
        elif mn in ('s_branch', 's_endpgm', 's_sleep', 's_setprio') or mn.startswith('s_cbranch'):
            self.kind = 'ctl'
            if 'vcc' in mn: rd = [('vcc', 0)]
            if 'scc' in mn: rd = [('scc', 0)]
        elif mn.startswith('s_cmp'):
            self.kind = 'salu'; rd = allr(0); wr = [('scc', 0)]
        elif mn.startswith('s_'):
            self.kind = 'salu'; wr = R(0); rd = allr(1)
            if mn.startswith(('s_add', 's_sub', 's_and', 's_or', 's_xor', 's_lshl', 's_lshr')): wr = wr + [('scc', 0)]
            if mn.startswith(('s_cselect', 's_addc', 's_subb')): rd = rd + [('scc', 0)]
            if 'saveexec' in mn: wr = wr + [('exec', 0)]
        elif mn.startswith('v_'):
            self.kind = 'trans' if mn in TRANS else 'valu'
            wr = R(0); rd = allr(1)
            if mn.startswith('v_permlane') or mn.startswith('v_swap'):
                wr = R(0) + R(1); rd = R(0) + R(1)
            if mn.startswith(('v_fmac', 'v_writelane')): rd = rd + R(0)
            if mn.startswith('v_cndmask') and len(ops) == 3: rd = rd + [('vcc', 0)]
        else:
            raise ValueError('unknown instr ' + text)
        self.rd = rd; self.wr = wr

def W(cnt, need):
    i = I('s_waitcnt placeholder'); i.kind = 'wait'; i.need = (cnt, need); return i

def need_regs(*rs):
    s = set()
    for r in rs: s.update(regs_of(r))
    return lambda op: any(x in s for x in op.wr)
def need_tag(f):
    return lambda op: op.tag is not None and f(op.tag)
need_all = lambda op: True

class Prog:
    def __init__(self):
        self.order = []; self.static = {}; self.trace = []
    def place(self, name):
        if name not in self.order: self.order.append(name)
    def run(self, name, instrs):
        instrs = [x if isinstance(x, I) else I(x) for x in instrs]
        if name in self.static:
            st = self.static[name]
            assert len(st) == len(instrs), (name, len(st), len(instrs))
            for a, b in zip(st, instrs):
                assert a.text == b.text, (name, a.text, b.text)
        else:
            self.static[name] = instrs
            self.place(name)
        self.trace.append((name, instrs))
    def add_static(self, name, instrs):
        instrs = [x if isinstance(x, I) else I(x) for x in instrs]
        self.static[name] = instrs; self.place(name)

VM = ('dma', 'vld', 'vst'); LG = ('ds', 'dsw')

def parse_wait(text):
    vm = re.search(r'vmcnt\((\d+)\)', text); lg = re.search(r'lgkmcnt\((\d+)\)', text)
    return (int(vm.group(1)) if vm else None, int(lg.group(1)) if lg else None)

def resolve_waits(traces):
    res = {}
    for _pass in range(3):
        changed = False
        for trace in traces:
            q = {'vm': [], 'lgkm': []}
            for name, ins in trace:
                for k, op in enumerate(ins):
                    if op.kind in VM: q['vm'].append(op)
                    elif op.kind in LG: q['lgkm'].append(op)
                    elif op.kind == 'smem': q['lgkm'].append(op)
                    elif op.kind == 'wait':
                        if op.need is not None:
                            c, pred = op.need
                            last = -1
                            for j, o in enumerate(q[c]):
                                if pred(o): last = j
                            n = len(q[c]) - 1 - last
                            mx = 63 if c == 'vm' else 15
                            if last < 0: n = mx
                            n = min(n, mx)
                            key = (name, k)
                            if key not in res or n < res[key]:
                                res[key] = n; changed = True
                            n = res[key]
                            if len(q[c]) > n: q[c] = q[c][len(q[c]) - n:] if n else []
                        else:
                            vm, lg = parse_wait(op.text)
                            if vm is not None and len(q['vm']) > vm: q['vm'] = q['vm'][len(q['vm']) - vm:] if vm else []
                            if lg is not None and len(q['lgkm']) > lg: q['lgkm'] = q['lgkm'][len(q['lgkm']) - lg:] if lg else []
        if not changed: break
    return res

def wait_text(op, n):
    c = op.need[0]
    return f"s_waitcnt vmcnt({n})" if c == 'vm' else f"s_waitcnt lgkmcnt({n})"

def check(trace, res, private=lambda region: False, verbose=True):
    errs = []
    q = {'vm': [], 'lgkm': []}
    pend = {}
    t = 0; n = 0; last_mfma = -100
    lastw = {}
    lastC = {}
    laststore = {}
    nbar = 0
    dma_done = {}
    rd_state = {}
    cur_ver = {}
    def retire(c, keep):
        while len(q[c]) > keep:
            o = q[c].pop(0)
            for r in o.wr:
                if pend.get(r) is o: del pend[r]
            if o.kind == 'dma' and o.tag and o.tag[0] == 'lds':
                d = dma_done[o.tag[1:3]]; d[1] += 1; d[2] = nbar
            if o.kind == 'dsw' and o.tag and o.tag[0] == 'lds':
                d = dma_done[o.tag[1:3]]; d[1] += 1; d[2] = nbar
            if o.kind == 'ds' and o.src:
                d = rd_state[o.src]; d[0] -= 1; d[1] = nbar
    for name, ins in trace:
        for k, op in enumerate(ins):
            if op.kind == 'pseudo': continue
            where = f"{name}[{k}] {op.text}"
            if op.kind == 'mfma':
                t = max(t, last_mfma + 16)
            for r in op.rd + op.wr:
                if r in pend and not (op.kind in ('vld',) and 'd16' in op.mn):
                    errs.append(f"use of pending load reg {r}: {where} (load: {pend[r].text})")
            isv = op.kind in ('valu', 'trans')
            for r in set(op.rd):
                if r in lastw:
                    wk, wn, wt, wop = lastw[r]
                    gap = n - wn - 1
                    if wk == 'mfma':
                        if op.kind == 'mfma':
                            if r in op.AB and t - wt < 40: errs.append(f"mfma D->AB {r}: {where}")
                            if r in op.srcC and op.srcC != wop.wr and t - wt < 32: errs.append(f"mfma D->C overlap {r}: {where}")
                        elif t - wt < 40: errs.append(f"mfma D->read {r} dt={t-wt}: {where}")
                    elif wk in ('valu', 'trans'):
                        if op.kind == 'mfma' and gap < 2: errs.append(f"valu->mfma {r}: {where}")
                        if wk == 'trans' and op.kind == 'valu' and gap < 1: errs.append(f"trans->valu {r}: {where}")
                        if op.mn.startswith('v_permlane') and gap < 2: errs.append(f"valu->permlane {r}: {where}")
                        if op.mn.startswith(('v_readfirstlane', 'v_readlane')) and r[0] == 'v' and gap < 1: errs.append(f"valu->readlane {r}: {where}")
                        if r[0] in ('s', 'vcc'):
                            if op.kind in VM and gap < 5: errs.append(f"valu sgpr->vmem {r}: {where}")
                            if isv and gap < 2: errs.append(f"valu sgpr->valu {r}: {where}")
                            if op.kind in ('salu', 'ctl') and gap < 2: errs.append(f"valu sgpr->salu {r}: {where}")
                    elif wk == 'salu':
                        if r == ('m0', 0) and op.kind == 'dma' and gap < 1: errs.append(f"m0->dma: {where}")
            for r in set(op.wr):
                if r in lastw and lastw[r][0] == 'mfma' and op.kind != 'mfma' and t - lastw[r][2] < 40:
                    errs.append(f"mfma D->write (WAW) {r}: {where}")
                if isv and r in lastC and t - lastC[r] < 20: errs.append(f"mfma C read->valu write {r}: {where}")
                if r in laststore and n - laststore[r] - 1 < 2: errs.append(f"store data WAR {r}: {where}")
            if op.kind in ('dma', 'dsw') and op.tag and op.tag[0] == 'lds':
                key = op.tag[1:3]; region = key[0]
                dma_done.setdefault(key, [0, 0, -1])[0] += 1
                for (rg, ver), st in rd_state.items():
                    if rg == region and ver != key[1]:
                        if st[0] > 0: errs.append(f"LDS WAR: write {key} while reads of {(rg,ver)} outstanding: {where}")
                        elif not private(region) and st[1] >= nbar: errs.append(f"LDS WAR: write {key} w/o barrier after reads of {(rg,ver)}: {where}")
                for (rg, ver), d in dma_done.items():
                    if rg == region and ver != key[1]:
                        if d[0] != d[1] and not private(region): errs.append(f"LDS WAW: write {key} while writes of {(rg,ver)} outstanding: {where}")
                        elif not private(region) and d[2] >= nbar: errs.append(f"LDS WAW: write {key} w/o barrier after writes {(rg,ver)}: {where}")
                cur_ver[region] = key[1]
            if op.kind == 'ds' and op.src:
                key = op.src
                d = dma_done.get(key)
                if d is None: errs.append(f"LDS read of never-written {key}: {where}")
                else:
                    if d[0] != d[1]: errs.append(f"LDS RAW: read {key} with {d[0]-d[1]} writes outstanding: {where}")
                    elif not private(key[0]) and d[2] >= nbar: errs.append(f"LDS RAW: read {key} w/o barrier: {where}")
                    if cur_ver.get(key[0]) != key[1]: errs.append(f"LDS read {key} but region holds {cur_ver.get(key[0])}: {where}")
                st = rd_state.setdefault(key, [0, -1]); st[0] += 1
            if op.kind in VM:
                q['vm'].append(op)
                if len(q['vm']) > 63: retire('vm', 63)
            if op.kind in LG or op.kind == 'smem': q['lgkm'].append(op)
            if op.kind in ('vld', 'ds', 'smem'):
                for r in op.wr: pend[r] = op
            if op.kind == 'wait':
                if op.need is not None:
                    retire(op.need[0], res[(name, k)])
                else:
                    vm, lg = parse_wait(op.text)
                    if vm is not None: retire('vm', vm)
                    if lg is not None: retire('lgkm', lg)
            if op.kind == 'barrier': nbar += 1
            for r in op.wr: lastw[r] = (op.kind, n, t, op)
            if op.kind == 'mfma':
                for r in op.srcC: lastC[r] = t
                last_mfma = t
            if op.kind == 'vst' and ('x4' in op.mn or 'x3' in op.mn):
                for r in regs_of(op.text.split(None, 1)[1].split(',')[0]): laststore[r] = n
            n += op.states; t += 4 * op.states
    return errs

def emit(prog, res):
    out = []
    for name in prog.order:
        out.append(f"; ---- block {name}")
        for k, op in enumerate(prog.static[name]):
            if op.kind == 'wait' and op.need is not None:
                out.append("    " + wait_text(op, res[(name, k)]))
            elif op.kind == 'pseudo':
                out.append(op.text)
            else:
                out.append("    " + op.text)
    return "\n".join(out)

def weave(mfmas, fill):
    out = []
    for g, m in enumerate(mfmas):
        out.append(m)
        out.extend(fill.get(g, []))
    assert all(0 <= g < len(mfmas) for g in fill), sorted(fill)
    return out
```

```python
import sys, math
from dsl import *

NAME = "concat_heads__mha_block_cached__mha_block_cached__near_ridge_kernel"
OPT = dict(stamps=False, dbgq=False, kvnt=True)

def v(b, n=1): return f"v{b}" if n == 1 else f"v[{b}:{b+n-1}]"
def a(b, n=1): return f"a{b}" if n == 1 else f"a[{b}:{b+n-1}]"
def M(d, A, B, C): return I(f"v_mfma_f32_16x16x32_bf16 {d}, {A}, {B}, {C}")

V_LANE = 1
V_XO = [2, 3, 4]; V_WQO = [5, 6, 7, 38]
V_KV = [8, 9]
V_KA = [10, 14]; V_VA = [18, 26]
V_ONES = 34
V_NEGM = 40
V_QXA = 40; V_QWA = 41
ACC = 64
KF = 64; VF = [96, 128]; SB = [160, 168]; PB = [176, 180]
TMPA = 184; TMPB = 248
def LREG(g): return 208 + 4 * g if g < 4 else 240 + 4 * (g - 4)
def QF(g, ks):
    if g < 4: return a(192 + 16 * g + 4 * ks, 4)
    return v((192 if g == 4 else 224) + 4 * ks, 4)
def OACC(i, g): return (g * 8 + i) * 4
XB = [192, 216]; WA = 240

S_W, S_HP, S_R, S_GEN = 4, 5, 6, 7
SX, SWQ, SKV, SO, SWO, SOUT, SDBG = 8, 12, 16, 20, 24, 28, 32
S_C, S_J = 36, 37
S_XS, S_WS, S_KS = 38, 39, 40
S_MX, S_MW, S_MK = 41, 42, 43
S_CNT, S_ME = 44, 45
S_SC = 46
S_OS = 48
S_OPW, S_OPB, S_OPM = 49, 50, 51
S_T = 52
S_KVP = 62; S_WQP = 64
S_STAMP = 70
def srd(b): return f"s[{b}:{b+3}]"
SLOT = [0, 32768, 65536, 98304]; XSLOT = 131072
NT = " nt" if OPT['kvnt'] else ""

def stamp():
    if not OPT['stamps']: return []
    return ["s_memtime s[58:59]", "s_waitcnt lgkmcnt(0)", "s_mov_b32 s59, m0", "s_mov_b32 m0, s69", "s_nop 0",
            "v_writelane_b32 v39, s58, m0", "s_mov_b32 m0, s59", "s_add_u32 s69, s69, 1"]

def dma(voff, sr, soff, off, region, ver, flags=""):
    return I(f"buffer_load_dwordx4 {v(voff)}, {srd(sr)}, s{soff} offen offset:{off}{flags} lds", tag=('lds', region, ver))

def prologue():
    p = []
    A = p.append
    A("s_cmp_ge_u32 s2, 256")
    A("s_cbranch_scc1 L_end")
    A("v_lshrrev_b32 v2, 6, v0")
    A("v_and_b32 v1, 63, v0")
    A("s_and_b32 s52, s2, 7")
    A("v_readfirstlane_b32 s4, v2")
    A("s_lshr_b32 s53, s2, 3")
    A("s_lshr_b32 s54, s53, 3")
    A("s_lshl_b32 s36, s52, 2")
    A("s_add_u32 s36, s36, s54")
    A("s_and_b32 s37, s53, 7")
    A("s_lshr_b32 s55, s36, 4")
    A("s_and_b32 s56, s36, 15")
    A("s_lshr_b32 s5, s4, 1")
    A("s_and_b32 s6, s4, 1")
    A("s_mul_i32 s57, s55, 40")
    A("s_add_u32 s58, s0, s57")
    A("s_addc_u32 s59, s1, 0")
    A("s_load_dwordx2 s[8:9], s[58:59], 0")
    A("s_load_dwordx4 s[12:15], s[58:59], 8")
    A("s_load_dwordx2 s[64:65], s[58:59], 24")
    A("s_load_dwordx2 s[24:25], s[58:59], 32")
    A("s_load_dwordx2 s[28:29], s[0:1], 80")
    A("s_load_dwordx2 s[32:33], s[0:1], 88")
    A("s_load_dwordx2 s[20:21], s[0:1], 96")
    A("v_lshrrev_b32 v40, 4, v1")
    A("v_and_b32 v41, 15, v1")
    A("v_lshrrev_b32 v42, 2, v1")
    A("v_and_b32 v43, 3, v1")
    A("v_bfe_u32 v44, v1, 2, 2")
    A("v_lshlrev_b32 v45, 1, v40")
    A("v_xor_b32 v45, v45, v41")
    A("v_lshlrev_b32 v45, 4, v45")
    A("v_lshl_add_u32 v8, v40, 8, v45")
    A("v_xor_b32 v9, 0x80, v8")
    A("v_and_b32 v45, 1, v40")
    A("v_lshlrev_b32 v45, 1, v45")
    A("v_xor_b32 v45, v45, v43")
    A("v_lshlrev_b32 v45, 4, v45")
    A("v_mul_u32_u24 v46, 1280, v42")
    A("s_mul_i32 s52, s4, 61440")
    A("v_add3_u32 v2, v45, v46, s52")
    A("v_add_u32 v3, 19456, v2")
    A("v_add_u32 v4, 38912, v2")
    A("v_lshlrev_b32 v45, 2, v40")
    A("v_xor_b32 v45, v45, v41")
    A("v_lshlrev_b32 v45, 4, v45")
    A("v_lshl_add_u32 v45, v40, 13, v45")
    A("s_lshl_b32 s52, s6, 17")
    A("v_add_u32 v5, s52, v45")
    A("v_add_u32 v6, 31744, v5")
    A("v_add_u32 v7, 63488, v5")
    A("v_add_u32 v38, 95232, v5")
    A("v_and_b32 v45, 7, v41")
    A("v_lshlrev_b32 v45, 1, v45")
    A("v_xor_b32 v45, v45, v40")
    A("v_lshlrev_b32 v45, 4, v45")
    A("v_lshl_add_u32 v45, v41, 8, v45")
    A("s_lshl_b32 s52, s5, 14")
    A("v_add_u32 v10, s52, v45")
    for ks in range(1, 4): A(f"v_xor_b32 v{10+ks}, {64*ks}, v10")
    for ks in range(4): A(f"v_add_u32 v{14+ks}, 0x10000, v{10+ks}")
    A("v_lshl_add_u32 v45, v40, 2, v44")
    A("v_and_b32 v46, 7, v45")
    A("v_lshlrev_b32 v46, 1, v46")
    A("v_lshrrev_b32 v47, 1, v43")
    A("v_xor_b32 v46, v46, v47")
    A("v_lshlrev_b32 v46, 4, v46")
    A("v_lshl_add_u32 v46, v45, 8, v46")
    A("v_and_b32 v47, 1, v43")
    A("v_lshl_add_u32 v46, v47, 3, v46")
    A("s_add_u32 s52, s52, 8192")
    A("v_add_u32 v18, s52, v46")
    for i in range(1, 8): A(f"v_xor_b32 v{18+i}, {32*i}, v18")
    for i in range(8): A(f"v_add_u32 v{26+i}, 0x10000, v{18+i}")
    for i in range(4): A(f"v_mov_b32 v{V_ONES+i}, 0x3f803f80")
    A("s_mul_i32 s41, s4, 3072")
    A("s_lshl_b32 s42, s4, 12")
    A("s_add_u32 s42, s42, 12288")
    A("s_lshl_b32 s43, s4, 13")
    c = math.log2(math.e) / math.sqrt(128.0)
    import struct
    cb = struct.unpack('<I', struct.pack('<f', c))[0]
    A(f"s_mov_b32 s46, {cb:#x}")
    A(f"s_mov_b32 s47, {cb:#x}")
    A("s_mov_b32 s7, 0")
    if OPT['stamps']:
        A("s_memrealtime s[68:69]"); A("v_mov_b32 v39, 0")
    A("s_waitcnt lgkmcnt(0)")
    if OPT['stamps']: A("s_mov_b32 s69, 0")
    A("s_mul_i32 s52, s56, 245760")
    A("s_add_u32 s8, s8, s52")
    A("s_addc_u32 s9, s9, 0")
    A("s_mov_b32 s10, 245760")
    A("s_mov_b32 s11, 0x20000")
    A("s_cmp_eq_u32 s6, 0")
    A("s_cselect_b32 s62, s12, s14")
    A("s_cselect_b32 s63, s13, s15")
    A("s_lshl_b32 s52, s37, 1")
    A("s_add_u32 s52, s52, s5")
    A("s_lshl_b32 s53, s56, 5")
    A("s_add_u32 s53, s53, s52")
    A("s_lshl_b32 s53, s53, 17")
    A("s_add_u32 s62, s62, s53")
    A("s_addc_u32 s63, s63, 0")
    A("s_mov_b32 s16, s62")
    A("s_mov_b32 s17, s63")
    A("s_mov_b32 s18, 131072")
    A("s_mov_b32 s19, 0x20000")
    A("s_lshl_b32 s53, s52, 8")
    A("s_add_u32 s12, s64, s53")
    A("s_addc_u32 s13, s65, 0")
    A("s_sub_u32 s14, 5242880, s53")
    A("s_mov_b32 s15, 0x20000")
    A("s_mul_i32 s53, s36, 1572864")
    A("s_add_u32 s20, s20, s53")
    A("s_addc_u32 s21, s21, 0")
    A("s_mov_b32 s22, 1572864")
    A("s_mov_b32 s23, 0x20000")
    A("s_lshl_b32 s53, s6, 5")
    A("s_add_u32 s53, s53, s52")
    A("s_mul_i32 s48, s53, 24576")
    A("s_lshr_b32 s53, s37, 1")
    A("s_mul_i32 s53, s53, 320")
    A("s_add_u32 s24, s24, s53")
    A("s_addc_u32 s25, s25, 0")
    A("s_sub_u32 s26, 5242880, s53")
    A("s_mov_b32 s27, 0x20000")
    A("s_and_b32 s54, s37, 1")
    A("s_mul_i32 s54, s54, 96")
    A("s_mul_i32 s57, s56, 192")
    A("s_add_u32 s54, s54, s57")
    A("s_mul_i32 s54, s54, 2560")
    A("s_mul_i32 s57, s55, 1280")
    A("s_add_u32 s54, s54, s57")
    A("s_add_u32 s54, s54, s53")
    A("s_add_u32 s28, s28, s54")
    A("s_addc_u32 s29, s29, 0")
    A(f"s_mov_b32 s30, {95*2560+320}")
    A("s_mov_b32 s31, 0x20000")
    A("s_mov_b32 s34, 256")
    A("s_mov_b32 s35, 0x20000")
    p += stamp()
    for s in range(3): p += q_stage_loads(0, s, 7)
    p += q_stage_loads(0, 3, 5)
    return p

def q_stage_loads(gen, s, npieces):
    reg = f"R{s&3}"; ver = ('Q', gen, s)
    p = [f"s_mov_b32 s{S_XS}, {64*s}", f"s_mov_b32 s{S_WS}, {262144*s}", f"s_add_u32 m0, s{S_MX}, {SLOT[s&3]}", "s_nop 0"]
    for k in range(3): p.append(dma(V_XO[k], SX, S_XS, 1024*k, reg, ver))
    p += [f"s_add_u32 m0, s{S_MW}, {SLOT[s&3]}", "s_nop 0"]
    for k in range(npieces - 3): p.append(dma(V_WQO[k], SWQ, S_WS, 1024*k, reg, ver))
    return p

def qA(mt, gen, s):
    ks, t = mt >> 1, mt & 1
    d = WA + 4 * (mt & 3)
    return [I(f"ds_read_b64_tr_b16 {a(d+2*hh,2)}, {v(V_QWA+ks)} offset:{1024*hh+8*t}", src=(f"R{s&3}", ('Q', gen, s))) for hh in range(2)]
def qB(g, gen, s):
    return I(f"ds_read_b128 {a(XB[s&1]+4*g,4)}, {v(V_QXA)} offset:{1024*g}", src=(f"R{s&3}", ('Q', gen, s)))

def q_pre(gen):
    p = ["L_qpre:"]
    A = p.append
    A("v_lshrrev_b32 v45, 4, v1")
    A("v_and_b32 v46, 15, v1")
    A("v_bfe_u32 v47, v1, 2, 1")
    A("v_lshlrev_b32 v47, 1, v47")
    A("v_xor_b32 v47, v47, v45")
    A("v_lshlrev_b32 v47, 4, v47")
    A("v_lshl_add_u32 v47, v46, 6, v47")
    A("s_mul_i32 s52, s6, 6144")
    A(f"v_add_u32 v{V_QXA}, s52, v47")
    A("v_bfe_u32 v47, v1, 2, 2")
    A("v_and_b32 v48, 3, v1")
    A("v_lshl_add_u32 v48, v47, 2, v48")
    A("v_lshlrev_b32 v48, 4, v48")
    A("v_lshl_add_u32 v47, v45, 3, v47")
    A("v_lshl_add_u32 v48, v47, 8, v48")
    A("s_lshl_b32 s52, s5, 13")
    A("s_add_u32 s52, s52, 12288")
    A(f"v_add_u32 v{V_QWA}, s52, v48")
    for ks in range(1, 4): A(f"v_xor_b32 v{V_QWA+ks}, {64*ks}, v{V_QWA}")
    A(f"s_mov_b32 s{S_XS}, {64*3}")
    A(f"s_mov_b32 s{S_WS}, {262144*3}")
    A(f"s_mov_b32 s{S_KS}, 0")
    A(f"s_add_u32 s{S_ME}, s{S_MK}, {XSLOT}")
    A(f"s_mov_b32 s{S_CNT}, 4")
    p += q_zero()
    A(W('vm', need_tag(lambda t: t[2] == ('Q', gen, 0))))
    A("s_barrier")
    p += stamp()
    for mt in range(3): p += qA(mt, gen, 0)
    for g in range(6): A(qB(g, gen, 0))
    A(f"s_add_u32 m0, s{S_MW}, {SLOT[3]}")
    return p

def kv_batch(gen, tile):
    reg = f"R{(tile-1)&3}"; ver = ('KV', gen, tile); base = SLOT[(tile-1)&3]
    L = []
    for grp in range(2):
        L.append(('s', f"s_add_u32 m0, s{S_MK}, {base+4096*grp}"))
        for k in range(4): L.append(('d', dma(V_KV[k&1], SKV, S_KS, 1024*k, reg, ver, NT)))
        L.append(('s', f"s_add_u32 s{S_KS}, s{S_KS}, 4096"))
    return L

def q_step(gen, s, first):
    mf = []
    for mt in range(8):
        for g in range(6):
            d = v(ACC + 32*g + 4*mt, 4)
            mf.append(M(d, a(WA+4*(mt&3),4), a(XB[s&1]+4*g,4), d))
    F = {}
    def put(g, *ins): F.setdefault(g, []).extend(ins)
    last = s == 19
    for mt in range(3, 8):
        r = qA(mt, gen, s); put(6*(mt-3), r[0]); put(6*(mt-3)+1, r[1])
    for mt in range(1, 8):
        put(6*mt-1, W('lgkm', need_regs(a(WA+4*(mt&3),4))))
    put(2, W('lgkm', need_regs(a(XB[s&1]+12,12))))
    if s <= 16:
        sp = s + 3
        put(2, dma(V_WQO[2], SWQ, S_WS, 2048, f"R{sp&3}", ('Q', gen, sp)))
        put(3, dma(V_WQO[3], SWQ, S_WS, 3072, f"R{sp&3}", ('Q', gen, sp)))
        put(4, f"s_add_u32 s{S_XS}, s{S_XS}, 64")
        put(4, f"s_add_u32 s{S_WS}, s{S_WS}, 262144")
    else:
        L = kv_batch(gen, s - 16)
        put(2, L[8][1]); put(3, L[9][1]); put(4, L[10][1], L[11][1])
    if s < 16 and (s & 1) == 0:
        put(8, f"s_mov_b32 m0, s{S_ME}")
        put(9, dma(V_KV[(s>>1)&1], SKV, S_KS, 0, 'X', ('KV', gen, 0), NT))
        put(10, f"s_add_u32 s{S_ME}, s{S_ME}, 1024")
        put(10, f"s_add_u32 s{S_KS}, s{S_KS}, 1024")
    if not last:
        dl = SLOT[(s+1)&3] - SLOT[s&3]
        for k in range(5):
            ins = f"v_add_u32 v{V_QXA+k}, {dl:#x}, v{V_QXA+k}" if dl > 0 else f"v_subrev_u32 v{V_QXA+k}, {-dl:#x}, v{V_QXA+k}"
            put(26 + k//2, ins)
    nxt = ('Q', gen, s+1) if not last else ('KV', gen, 0)
    put(29, W('vm', need_tag(lambda t: t[2] == nxt)))
    put(30, W('lgkm', need_all), "s_barrier")
    if not last:
        r0 = qA(0, gen, s+1); r1 = qA(1, gen, s+1); r2 = qA(2, gen, s+1)
        put(31, r0[0]); put(32, r0[1]); put(36, r1[0]); put(37, r1[1]); put(42, r2[0]); put(43, r2[1])
        for g, gp in zip(range(6), (33, 34, 35, 38, 39, 40)): put(gp, qB(g, gen, s+1))
        put(47, W('lgkm', need_regs(a(WA,4), a(XB[(s+1)&1],12))))
    if s <= 15:
        sp = s + 4; reg = f"R{sp&3}"; ver = ('Q', gen, sp)
        put(28, f"s_add_u32 m0, s{S_MX}, {SLOT[sp&3]}")
        for k, gp in enumerate((41, 44, 45)): F.setdefault(gp, []).insert(0, dma(V_XO[k], SX, S_XS, 1024*k, reg, ver))
        put(45, f"s_add_u32 m0, s{S_MW}, {SLOT[sp&3]}")
        put(46, dma(V_WQO[0], SWQ, S_WS, 0, reg, ver))
        F.setdefault(47, []).insert(0, dma(V_WQO[1], SWQ, S_WS, 1024, reg, ver))
    else:
        L = kv_batch(gen, s - 15)
        put(28, L[0][1])
        put(41, L[1][1]); put(44, L[2][1]); put(45, L[3][1]); put(46, L[4][1], L[5][1], L[6][1])
        F.setdefault(47, []).insert(0, L[7][1])
    return weave(mf, F)

def q_zero():
    return [f"v_mov_b32 v{r}, 0" for r in range(ACC, 256)]

def kread(f, gen, tile, aset, off):
    kt, ks = f >> 2, f & 3
    reg = 'X' if tile == 0 else f"R{(tile-1)&3}"
    return I(f"ds_read_b128 {v(KF+4*f,4)}, {v(aset+ks)} offset:{off+4096*kt}", src=(reg, ('KV', gen, tile)))
def vread(i, t, gen, tile, aset, off):
    reg = 'X' if tile == 0 else f"R{(tile-1)&3}"
    return I(f"ds_read_b64_tr_b16 {v(VF[tile&1]+4*i+2*t,2)}, {v(aset+i)} offset:{off+4096*t}", src=(reg, ('KV', gen, tile)))

def est_max(g):
    n = V_NEGM + 4*g; t = TMPA + (g & 1)
    return [f"v_max3_f32 v{n}, v{n}, v{n+1}, v{n+2}", f"v_max_f32 v{n}, v{n}, v{n+3}",
            f"v_mov_b32 v{n+1}, v{n}", "s_nop 1", f"v_permlane32_swap_b32 v{n}, v{n+1}", f"v_max_f32 v{n}, v{n}, v{n+1}",
            f"v_mov_b32 v{n+1}, v{n}", "s_nop 1", f"v_permlane16_swap_b32 v{n}, v{n+1}", f"v_max_f32 v{n}, v{n}, v{n+1}",
            f"v_mul_f32 v{n}, -1.0, v{n}", f"v_mov_b32 v{n+1}, v{n}", f"v_mov_b32 v{n+2}, v{n}", f"v_mov_b32 v{n+3}, v{n}"]

def transition(gen):
    p = []; A = p.append
    L = kv_batch(gen, 4)
    p += [L[8][1], L[9][1], L[10][1], L[11][1]]
    p += stamp()
    A("s_lshl_b32 s52, s7, 2"); A("s_sub_u32 s52, s52, s4"); A("s_cmp_eq_u32 s52, 4"); A("s_cbranch_scc1 L_sig0")
    A("L_nosig0:")
    A("s_add_u32 s12, s12, 4096"); A("s_addc_u32 s13, s13, 0")
    A("s_sub_u32 s14, s14, 4096")
    A("s_cmp_eq_u32 s7, 0"); A("s_cselect_b32 s14, s14, 0"); A("s_cselect_b32 s10, s10, 0")
    A("s_nop 7")
    def pack(g):
        b = ACC + 32*g; q = []
        for k in range(16): q.append(f"v_pk_mul_f32 {v(b+2*k,2)}, {v(b+2*k,2)}, s[46:47]")
        for k in range(16): q.append(f"v_cvt_pk_bf16_f32 v{b+k}, v{b+2*k}, v{b+2*k+1}")
        if g < 4:
            for k in range(16): q.append(f"v_accvgpr_write_b32 a{192+16*g+k}, v{b+k}")
        return q
    def est(g):
        d = v(V_NEGM+4*g, 4)
        return [M(d, v(KF+4*ks,4), QF(g, ks), "0" if ks == 0 else d) for ks in range(4)]
    p += pack(0)
    for ks in range(4): A(f"v_add_u32 v{52+ks}, 0x10000, v{V_KA[1]+ks}")
    for f in range(8): A(kread(f, gen, 0, 52, 0))
    p += pack(1)
    for i in range(8): A(f"v_add_u32 v{56+i}, 0x10000, v{V_VA[1]+i}")
    for i in range(8):
        for t in range(2): A(vread(i, t, gen, 0, 56, 0))
    A(W('lgkm', need_regs(v(KF, 16))))
    p += est(0); p += est(1)
    p += pack(2)
    p += est_max(0); p += est_max(1)
    p += est(2)
    p += pack(3)
    A("s_nop 1")
    p += est(3)
    p += pack(4)
    p += est_max(2); p += est_max(3)
    p += est(4)
    p += pack(5)
    A("s_nop 1")
    p += est(5)
    p += est_max(4)
    for k in range(32): A(f"v_accvgpr_write_b32 a{OACC(0,5)+k}, 0")
    for k in range(4): A(f"v_mov_b32 v{LREG(5)+k}, 0")
    p += est_max(5)
    A(W('lgkm', need_all))
    A(f"s_mov_b32 s{S_CNT}, 3")
    p += stamp()
    return p

EXPG = [7, 9, 11, 13, 15, 17, 19, 21]
CVTG = [10, 14, 18, 22]
def a_iter(gen, t, extra=None):
    mf = []; F = {}
    def put(g, *ins): F.setdefault(g, []).extend(ins)
    base = {}
    groups = range(6) if t < 16 else [0]
    for g in groups:
        base[g] = len(mf)
        if t < 16:
            for kt in range(2):
                d = v(SB[g&1]+4*kt, 4)
                for ks in range(4):
                    mf.append(M(d, v(KF+4*(4*kt+ks),4), QF(g, ks), v(V_NEGM+4*g,4) if ks == 0 else d))
        pt, pg = (t, g-1) if g > 0 else (t-1, 5)
        if pt >= 0:
            for i in range(8):
                d = a(OACC(i, pg), 4)
                mf.append(M(d, v(VF[pt&1]+4*i,4), v(PB[pg&1],4), "0" if (pt == 0 and pg < 5) else d))
            d = v(LREG(pg), 4)
            mf.append(M(d, v(V_ONES,4), v(PB[pg&1],4), "0" if (pt == 0 and pg < 5) else d))
    return mf, F, base

def softmax_ops(g):
    e = [f"v_exp_f32 v{SB[g&1]+k}, v{SB[g&1]+k}" for k in range(8)]
    c = [f"v_cvt_pk_bf16_f32 v{PB[g&1]+k}, v{SB[g&1]+2*k}, v{SB[g&1]+2*k+1}" for k in range(4)]
    return e, c

def a_tile(gen, t):
    mf, F, base = a_iter(gen, t)
    def put(g, *ins): F.setdefault(g, []).extend(ins)
    def putf(g, *ins):
        F.setdefault(g, [])[0:0] = list(ins)
    short0 = (t == 0)
    def pos(g, rel):
        if rel >= 17: return pos(g+1, rel-17) if g < 5 else None
        if g == 0 and short0:
            return None if rel > 7 else rel
        return base[g] + rel
    if t > 0:
        e, c = softmax_ops(5)
        for k in range(8):
            if EXPG[k] >= 17: put(EXPG[k]-17, e[k])
        for k in range(4):
            if CVTG[k] >= 17: put(CVTG[k]-17, c[k])
    for g in range(6):
        e, c = softmax_ops(g)
        if g == 0 and short0:
            put(7, "s_nop 3", *e[:4])
            put(7, c[0], c[1])
            for k in range(4, 8): put(base[1] + (k-4), e[k])
            put(base[1]+4, c[2]); put(base[1]+5, c[3])
            continue
        for k in range(8):
            q = pos(g, EXPG[k])
            if q is not None: put(q, e[k])
        for k in range(4):
            q = pos(g, CVTG[k])
            if q is not None: put(q, c[k])
    if t > 0:
        for f in (2, 4, 6):
            putf(f-1, W('lgkm', need_regs(v(KF+4*f,8))))
    if t < 15:
        bg = 7 if short0 else 8
        putf(bg-1, W('vm', (need_all if t == 13 else need_tag(lambda x: x[2] == ('KV', gen, t+1)))))
        putf(bg, "s_barrier")
    else:
        putf(8, "s_barrier")
    if t < 15:
        sl = t & 3; ka = V_KA[sl >> 1]; va = V_VA[sl >> 1]; off = 32768 * (sl & 1)
        k = 0
        for g in range(1, 5):
            for rel in (1, 5, 10, 14):
                putf(base[g]+rel, vread(k >> 1, k & 1, gen, t+1, va, off)); k += 1
        for f, rel in enumerate((1, 3, 5, 6, 8, 10, 12, 14)):
            putf(base[5]+rel, kread(f, gen, t+1, ka, off))
        put(base[5]+16, W('lgkm', need_regs(v(KF,8))))
    dg = [(0, 12), (0, 16), (1, 3), (1, 6), (1, 8), (1, 12), (1, 16), (2, 3)]
    if 1 <= t <= 12:
        L = kv_batch(gen, t+4)
        putf(base[0]+11, L[0][1])
        for k in range(4): putf(base[dg[k][0]]+dg[k][1], L[1+k][1])
        putf(base[1]+7, L[5][1], L[6][1])
        for k in range(4): putf(base[dg[4+k][0]]+dg[4+k][1], L[7+k][1])
        putf(base[2]+4, L[11][1])
    elif t >= 13:
        s = t - 13; reg = f"R{s}"; ver = ('Q', gen+1, s)
        putf(base[0]+9, f"s_mov_b32 s{S_XS}, {64*s}")
        putf(base[0]+11, f"s_add_u32 m0, s{S_MX}, {SLOT[s]}")
        putf(base[0]+13, f"s_mov_b32 s{S_WS}, {262144*s}")
        for k in range(3): putf(base[dg[k][0]]+dg[k][1], dma(V_XO[k], SX, S_XS, 1024*k, reg, ver))
        putf(base[1]+4, f"s_add_u32 m0, s{S_MW}, {SLOT[s]}")
        for k in range(4): putf(base[dg[3+k][0]]+dg[3+k][1], dma(V_WQO[k], SWQ, S_WS, 1024*k, reg, ver))
    return weave(mf, F)

def a_drain(gen):
    mf, F, base = a_iter(gen, 16)
    e, c = softmax_ops(5)
    p = [e[5], e[6], e[7], c[2], c[3], "s_nop 1"]
    return p + mf

V_RC = 44
def o_epi_head(gen):
    p = []; A = p.append
    p += q_stage_loads(gen+1, 3, 5)
    A("s_nop 4")
    A(f"v_max3_f32 v{TMPA}, v{LREG(0)}, v{LREG(1)}, v{LREG(2)}")
    A(f"v_max3_f32 v{TMPA+1}, v{LREG(3)}, v{LREG(4)}, v{LREG(5)}")
    for g in range(6): A(f"v_rcp_f32 v{V_RC+g}, v{LREG(g)}")
    return p

def o_epi(gen):
    p = []; A = p.append
    A("v_lshlrev_b32 v50, 4, v1")
    n = 0
    for g in range(6):
        for sp in range(4):
            tb = 64 + 8 * (n % 4); pk = 96 + 4 * (n % 8)
            for k in range(8): A(f"v_accvgpr_read_b32 v{tb+k}, a{OACC(2*sp, g)+k}")
            for k in range(8): A(f"v_mul_f32 v{tb+k}, v{V_RC+g}, v{tb+k}")
            for k in range(4): A(f"v_cvt_pk_bf16_f32 v{pk+k}, v{tb+2*k}, v{tb+2*k+1}")
            off = (sp * 6 + g) * 1024
            A(f"s_add_u32 s52, s{S_OS}, {off & ~4095}")
            A(I(f"buffer_store_dwordx4 {v(pk,4)}, v50, {srd(SO)}, s52 offen offset:{off & 4095} sc1", tag=('ost', 0, gen)))
            n += 1
    A(f"s_add_u32 s{S_OS}, s{S_OS}, {16*24576}")
    A("s_add_u32 s16, s16, 0x200000"); A("s_addc_u32 s17, s17, 0")
    p += stamp()
    return p

OPK = 64
OPB = [184, 208, 232, 40]
OPA = 192
V_WOO = [8, 9, 10, 11, 12]; V_TRA = [13, 14, 15, 16]; V_BO = [17, 18]
def opacc(nt, g):
    return v(OPK + 4*(nt*6+g), 4) if nt < 5 else a(4*((nt-5)*6+g), 4)
def op_loads(s):
    L = []
    reg = f"W{s&3}"; ver = ('OP', s)
    st = s & 3
    for h in range(2):
        L.append(('s', f"s_add_u32 s53, s{S_OPW}, {(32*st+16*h)*1280}"))
        L.append(('s', f"s_add_u32 m0, s{S_OPM}, {10240*st+5120*h}"))
        for k in range(4): L.append(('d', dma(V_WOO[k], SWO, 53, 1024*k, reg, ver)))
        L.append(('s', f"s_add_u32 m0, s{S_OPM}, {10240*st+5120*h+4096}"))
        L.append(('d', dma(V_WOO[4], SWO, 53, 0, reg, ver)))
    L.append(('s', f"s_add_u32 s54, s{S_OPB}, {6144*st}"))
    for g in range(6):
        L.append(('d', I(f"buffer_load_dwordx4 {v(OPB[st]+4*g,4)}, {v(V_BO[g//3])}, {srd(SO)}, s54 offen offset:{1024*(g%3)} sc1", tag=('ob', 0, ver))))
    return L

def op_pre():
    p = []; A = p.append
    p += poll(0xff, 8, "a")
    A("s_waitcnt vmcnt(0)")
    A("s_barrier")
    A("s_mul_i32 s51, s4, 40960")
    for k in range(5):
        A(f"v_add_u32 v20, {64*k}, v1")
        A("v_mul_u32_u24 v21, 3277, v20")
        A("v_lshrrev_b32 v21, 16, v21")
        A("v_mul_u32_u24 v22, 20, v21")
        A("v_sub_u32 v22, v20, v22")
        A("v_bfe_u32 v23, v21, 2, 1")
        A("v_lshlrev_b32 v23, 1, v23")
        A("v_xor_b32 v22, v22, v23")
        A("v_lshlrev_b32 v22, 4, v22")
        A("v_mul_u32_u24 v21, 1280, v21")
        A(f"v_add_u32 v{V_WOO[k]}, v21, v22")
        if 0 < k < 4: A(f"v_subrev_u32 v{V_WOO[k]}, {1024*k}, v{V_WOO[k]}")
    A("v_lshrrev_b32 v20, 4, v1")
    A("v_bfe_u32 v21, v1, 2, 2")
    A("v_lshl_add_u32 v21, v20, 2, v21")
    A("v_mul_u32_u24 v21, 320, v21")
    A("v_bfe_u32 v22, v1, 1, 1")
    A("v_lshl_add_u32 v21, v22, 4, v21")
    A("v_and_b32 v22, 1, v1")
    A("v_lshl_add_u32 v21, v22, 3, v21")
    A("v_add_u32 v21, s51, v21")
    A("v_and_b32 v20, 1, v20")
    for half in range(2):
        for par in range(2):
            A(f"s_xor_b32 s52, s6, {half}")
            A("s_mul_i32 s52, s52, 5")
            A(f"s_add_u32 s52, s52, {par}")
            A("v_xor_b32 v22, s52, v20")
            A(f"v_lshl_add_u32 v{V_TRA[2*half+par]}, v22, 5, v21")
    A("v_lshlrev_b32 v20, 4, v1")
    A("s_mul_i32 s52, s5, 3072")
    A(f"v_add_u32 v{V_BO[0]}, s52, v20")
    A("s_sub_u32 s52, 3072, s52")
    A(f"v_add_u32 v{V_BO[1]}, s52, v20")
    A("s_mul_i32 s49, s4, 655360")
    A("s_and_b32 s52, s37, 1")
    A("s_lshl_b32 s52, s52, 5")
    A("s_lshl_b32 s50, s4, 2")
    A("s_add_u32 s50, s50, s52")
    A("s_mul_i32 s50, s50, 24576")
    return p

def op_pre_loads(stages):
    p = []
    for s in stages:
        prev = None
        for kind, ins in op_loads(s):
            if kind == 'd' and prev == 'm0': p.append("s_nop 0")
            p.append(ins)
            prev = 'm0' if (kind == 's' and 'm0' in ins) else kind
    return p

def poll(mask, val, tag):
    sh = 0 if mask == 0xff else 8
    return ["s_cmp_eq_u32 s4, 0", f"s_cbranch_scc0 L_pollend{tag}",
            f"s_lshl_b32 s52, s{S_C}, 2", f"v_mov_b32 v{TMPA+4}, s52", "s_mov_b32 s55, 0x40000",
            f"L_poll{tag}:",
            f"buffer_load_dword v{TMPA+5}, v{TMPA+4}, {srd(SDBG)}, 0 offen sc1",
            "s_waitcnt vmcnt(0)",
            f"v_readfirstlane_b32 s52, v{TMPA+5}", "s_nop 3",
            f"s_lshr_b32 s52, s52, {sh}", "s_and_b32 s52, s52, 0xff",
            f"s_cmp_eq_u32 s52, {val}", f"s_cbranch_scc1 L_pollend{tag}",
            "s_sleep 8", "s_sub_u32 s55, s55, 1", "s_cmp_lg_u32 s55, 0", f"s_cbranch_scc1 L_poll{tag}",
            f"L_pollend{tag}:"]

def op_step(s):
    st = s & 3
    mf = []
    for nt in range(10):
        for g in range(6):
            d = opacc(nt, g)
            mf.append(M(d, a(OPA+4*((nt + 2*st) & 3),4), v(OPB[st]+4*g,4), d))
    F = {}
    def put(g, *ins): F.setdefault(g, []).extend(ins)
    def rd(nt, ss):
        half = 0 if nt < 5 else 1; x = nt - 5*half; ar = V_TRA[2*half + (x & 1)]
        d = OPA + 4*((nt + 2*(ss & 3)) & 3)
        return [I(f"ds_read_b64_tr_b16 {a(d+2*t,2)}, {v(ar)} offset:{10240*(ss&3)+5120*t+64*(x>>1)}", src=(f"W{ss&3}", ('OP', ss))) for t in range(2)]
    for nt in range(10):
        r = rd(nt+3, s) if nt + 3 < 10 else rd(nt+3-10, s+1)
        put(6*nt, r[0]); put(6*nt+1, r[1])
    for nt in range(1, 10):
        put(6*nt-1, W('lgkm', need_regs(a(OPA+4*((nt+2*st)&3),4))))
    put(59, W('lgkm', need_regs(a(OPA+4*((2*(st+1))&3),4))))
    put(41, W('vm', need_tag(lambda t: t[2] == ('OP', s+1))))
    L = op_loads(s+3)
    if st == 1: put(0+2, f"s_add_u32 s{S_OPW}, s{S_OPW}, s56"); put(2, f"s_add_u32 s{S_OPB}, s{S_OPB}, s57")
    dgaps = [3, 4, 9, 10, 15, 16, 21, 22, 27, 28, 33, 34, 39, 40, 45, 46]
    di = 0; pend = []
    for kind, ins in L:
        if kind == 's': pend.append(ins)
        else:
            gp = dgaps[di]; di += 1
            if pend: put(gp-1, *pend); pend = []
            F.setdefault(gp, []).insert(0, ins)
    return weave(mf, F), rd

def op_zero():
    return [f"v_mov_b32 v{r}, 0" for r in range(OPK, OPK+120)] + [f"v_accvgpr_write_b32 a{r}, 0" for r in range(120)]

def op_final():
    p = []; A = p.append
    A("s_waitcnt vmcnt(0) lgkmcnt(0)")
    A("s_barrier")
    p += stamp()
    A("v_lshlrev_b32 v8, 4, v1")
    A("s_mul_i32 s52, s4, 30720")
    A("v_add_u32 v9, s52, v8")
    A("s_xor_b32 s53, s4, 1"); A("s_mul_i32 s53, s53, 30720")
    A("v_add_u32 v10, s53, v8")
    A("s_nop 4")
    for k in range(30): A(I(f"ds_write_b128 v9, {a(4*k,4)} offset:{1024*k}", tag=('lds', 'RED', 1)))
    A("s_waitcnt lgkmcnt(0)"); A("s_barrier")
    T = 184
    def addback(tiles, addr, ver):
        q = []
        n = len(tiles)
        for k in range(min(8, n)): q.append(I(f"ds_read_b128 {v(T+4*k,4)}, v{addr} offset:{1024*k}", src=('RED', ver)))
        for k in range(n):
            q.append(W('lgkm', need_regs(v(T+4*(k%8),4))))
            for e in range(4): q.append(f"v_add_f32 v{tiles[k]+e}, v{tiles[k]+e}, v{T+4*(k%8)+e}")
            if k + 8 < n: q.append(I(f"ds_read_b128 {v(T+4*(k%8),4)}, v{addr} offset:{1024*(k+8)}", src=('RED', ver)))
        return q
    p += addback([OPK+4*k for k in range(30)], 10, 1)
    A("s_barrier")
    give = [OPK+4*(nt*6+g) for nt in range(5) for g in range(3, 6)]
    keep = [OPK+4*(nt*6+g) for nt in range(5) for g in range(3)]
    A("s_xor_b32 s53, s4, 2"); A("s_mul_i32 s53, s53, 30720")
    A("v_add_u32 v10, s53, v8")
    for k, r in enumerate(give): A(I(f"ds_write_b128 v9, {v(r,4)} offset:{1024*k}", tag=('lds', 'RED', 2)))
    A("s_waitcnt lgkmcnt(0)"); A("s_barrier")
    p += addback(keep, 10, 2)
    A("v_and_b32 v11, 15, v1")
    A("v_mul_u32_u24 v11, 2560, v11")
    A("v_lshrrev_b32 v12, 4, v1")
    A("v_lshl_add_u32 v11, v12, 3, v11")
    A(f"s_mul_i32 s52, s5, {48*2560}")
    A("s_mul_i32 s53, s6, 160")
    A("s_add_u32 s52, s52, s53")
    A("v_add_u32 v11, s52, v11")
    for y in range(3):
        A(f"s_mov_b32 s53, {y*16*2560}")
        for x in range(5):
            r = OPK + 4*(x*6+y); d = T + 2*((y*5+x) % 8)
            A(f"v_cvt_pk_bf16_f32 v{d}, v{r}, v{r+1}")
            A(f"v_cvt_pk_bf16_f32 v{d+1}, v{r+2}, v{r+3}")
            A(f"buffer_store_dwordx2 {v(d,2)}, v11, {srd(SOUT)}, s53 offen offset:{32*x}")
    p += stamp()
    return p

def stamp_dump():
    if not OPT['stamps']: return []
    return ["s_load_dwordx2 s[56:57], s[0:1], 96", "s_memrealtime s[52:53]", "s_waitcnt lgkmcnt(0)",
         "s_sub_u32 s52, s52, s68", "s_mov_b32 m0, 63", "s_nop 0", "v_writelane_b32 v39, s52, m0",
         "s_add_u32 s56, s56, 0x4000000", "s_addc_u32 s57, s57, 0", "s_mov_b32 s58, 0x100000", "s_mov_b32 s59, 0x20000",
         "s_lshl_b32 s52, s2, 10", "v_lshlrev_b32 v8, 2, v0", "s_nop 4",
         "buffer_store_dword v39, v8, s[56:59], s52 offen"]

def build():
    P = Prog()
    P.run("prologue", prologue())
    for gen in range(2):
        P.run("qpre", q_pre(gen) + [W('lgkm', need_regs(a(WA,4), a(XB[0],12)))])
        for ps in range(4):
            body = ["L_qloop:"]
            for k in range(4): body += q_step(gen, 4*ps+k, False)
            body += [f"s_sub_u32 s{S_CNT}, s{S_CNT}, 1", f"s_cmp_lg_u32 s{S_CNT}, 0", "s_cbranch_scc1 L_qloop"]
            P.run("qloop", body)
        tail = []
        for s in range(16, 20): tail += q_step(gen, s, False)
        P.run("qtail", tail)
        P.run("trans", transition(gen))
        P.run("a0", a_tile(gen, 0))
        for ps in range(3):
            body = ["L_aloop:"]
            for k in range(4): body += a_tile(gen, 1+4*ps+k)
            body += [f"s_sub_u32 s{S_CNT}, s{S_CNT}, 1", f"s_cmp_lg_u32 s{S_CNT}, 0", "s_cbranch_scc1 L_aloop"]
            P.run("aloop", body)
        P.run("atail", a_tile(gen, 13) + a_tile(gen, 14) + a_tile(gen, 15) + a_drain(gen) + stamp())
        P.run("oepih", o_epi_head(gen) + ["s_cmp_eq_u32 s7, 0", "s_cbranch_scc1 L_oepi"])
        if gen == 1:
            P.run("oppre", op_pre() + op_pre_loads([0, 1, 2]))
        else:
            P.place("oppre")
        P.run("oepi", ["L_oepi:"] + o_epi(gen) + ["s_add_u32 s7, s7, 1", "s_cmp_eq_u32 s7, 1", "s_cbranch_scc1 L_qpre"])
    _, rd = op_step(0)
    pre = op_zero() + [W('vm', need_tag(lambda t: t[2] == ('OP', 0)))]
    for nt in range(3): pre += rd(nt, 0)
    pre += ["s_mov_b32 s44, 0", f"s_mov_b32 s56, {128*1280}", "s_mov_b32 s57, 24576", W('lgkm', need_regs(a(OPA,4)))]
    P.run("opstart", pre)
    for ps in range(8):
        hdr = ["L_oploop:", "s_cmp_eq_u32 s44, 1", "s_cbranch_scc1 L_oppub", "s_cmp_eq_u32 s44, 3", "s_cbranch_scc1 L_oppoll",
               "s_cmp_eq_u32 s44, 4", "s_cbranch_scc1 L_opfix", "s_cmp_eq_u32 s44, 7", "s_cbranch_scc1 L_oplast", "L_opbody:"]
        P.run("ophdr", hdr)
        if ps == 1: P.run("oppub_", [W('vm', need_tag(lambda t: t[0] == 'ost')), "s_barrier"])
        body = []
        for k in range(4): body += op_step(4*ps+k)[0]
        body += ["s_add_u32 s44, s44, 1", "s_cmp_lg_u32 s44, 8", "s_cbranch_scc1 L_oploop"]
        P.run("opbody", body)
    P.run("opfinal", op_final() + stamp_dump() + ["L_end:", "s_endpgm"])
    return P

def finish(P):
    res = resolve_waits([P.trace])
    npub = res[("oppub_", 0)]
    P.order.remove("oppub_")
    P.add_static("oppub", ["L_oppub:", f"s_waitcnt vmcnt({npub})", "s_barrier", "s_cmp_eq_u32 s4, 0", "s_cbranch_scc0 L_opbody"] + signal_op(0x100) + ["s_branch L_opbody"])
    P.add_static("oppoll", ["L_oppoll:"] + poll_op() + ["s_barrier", f"s_mov_b32 s56, {13*128*1280}", f"s_mov_b32 s57, {13*24576}", "s_branch L_opbody"])
    P.add_static("sig0", ["L_sig0:"] + [x.replace("v20", "v62").replace("v21", "v63") for x in signal_op(1)] + ["s_branch L_nosig0"])
    P.add_static("opfix", ["L_opfix:", f"s_mov_b32 s56, {128*1280}", "s_mov_b32 s57, 24576", "s_branch L_opbody"])
    P.add_static("oplast", ["L_oplast:", "s_mov_b32 s56, 0x10000000", "s_mov_b32 s57, 0x10000000", "s_branch L_opbody"])
    errs = check(P.trace, res, private=lambda r: r.startswith('W'))
    return res, errs

def signal_op(val):
    return [f"v_mov_b32 v20, {val:#x}", f"s_lshl_b32 s52, s{S_C}, 2", "v_mov_b32 v21, s52", "s_mov_b64 exec, 1",
            f"buffer_atomic_add v20, v21, {srd(SDBG)}, 0 offen sc1", "s_mov_b64 exec, -1"]
def poll_op():
    return [x.replace(f"v{TMPA+4}", "v20").replace(f"v{TMPA+5}", "v21") if isinstance(x, str) else x for x in poll(0xff00, 8, "b")]

HEADER = open('concat_heads__mha_block_cached__mha_block_cached__near_ridge.s.ref').read().split("; Override launch")[0]

def text(P, res):
    body = emit(P, res)
    return (HEADER + "; @launch grid=(256,1,1) block=(256,1,1) lds=163840\n"
            '.amdgcn_target "amdgcn-amd-amdhsa--gfx950"\n.text\n'
            f".globl {NAME}\n.p2align 8\n.type {NAME},@function\n{NAME}:\n" + body + "\n"
            '.section .rodata,"a"\n.p2align 6\n'
            f".amdhsa_kernel {NAME}\n  .amdhsa_next_free_vgpr 512\n  .amdhsa_next_free_sgpr 102\n  .amdhsa_accum_offset 256\n"
            "  .amdhsa_group_segment_fixed_size 0\n  .amdhsa_float_denorm_mode_32 3\n  .amdhsa_kernarg_size 104\n  .amdhsa_user_sgpr_count 2\n"
            "  .amdhsa_user_sgpr_kernarg_segment_ptr 1\n  .amdhsa_system_sgpr_workgroup_id_x 1\n.end_amdhsa_kernel\n")

if __name__ == "__main__":
    out = sys.argv[1] if len(sys.argv) > 1 else "k.s"
    for o in sys.argv[2:]:
        k, val = o.split('='); OPT[k] = eval(val)
    NT = " nt" if OPT['kvnt'] else ""
    P = build()
    res, errs = finish(P)
    import re as _re
    seen = set()
    for e in errs:
        key = _re.sub(r"\('[a-z0-9]+', \d+\)", "", e)
        if key not in seen:
            seen.add(key)
            if len(seen) <= 60: print("ERR", e)
    print(len(errs), "checker errors")
    open(out, "w").write(text(P, res))
```

```python
import re

REG_RE = re.compile(r'^(-|abs\()?([vas])(\d+)\)?$')
RNG_RE = re.compile(r'^(-)?([vas])\[(\d+):(\d+)\]$')

def regs_of(tok):
    tok = tok.strip()
    m = REG_RE.match(tok)
    if m: return [(m.group(2), int(m.group(3)))]
    m = RNG_RE.match(tok)
    if m: return [(m.group(2), i) for i in range(int(m.group(3)), int(m.group(4)) + 1)]
    if tok in ('m0', 'vcc', 'exec', 'scc'): return [(tok, 0)]
    if tok in ('vcc_lo', 'vcc_hi'): return [('vcc', 0)]
    return []

TRANS = ('v_exp_f32', 'v_rcp_f32', 'v_log_f32', 'v_rsq_f32', 'v_sqrt_f32')

class I:
    __slots__ = ('text', 'kind', 'rd', 'wr', 'tag', 'src', 'need', 'mn', 'states', 'srcC', 'AB', 'label')
    def __init__(self, text, tag=None, src=None):
        self.text = text; self.tag = tag; self.src = src; self.need = None; self.label = None
        self.states = 1; self.srcC = []; self.AB = []
        t = text.split(';')[0].strip()
        if t.endswith(':') or t.startswith('.') or t == '':
            self.kind = 'pseudo'; self.rd = []; self.wr = []; self.mn = ''; self.states = 0; return
        parts = t.split(None, 1)
        mn = parts[0]; self.mn = mn
        ops = []
        if len(parts) > 1:
            ops = [o.strip() for o in parts[1].split(',')]
            last = ops[-1].split()
            mods = last[1:] if last else []
            if last: ops[-1] = last[0]
        else:
            mods = []
        R = lambda k: regs_of(ops[k]) if k < len(ops) else []
        allr = lambda a: [x for k in range(a, len(ops)) for x in R(k)]
        rd = []; wr = []
        if mn.startswith('v_mfma'):
            self.kind = 'mfma'; wr = R(0); self.AB = R(1) + R(2); self.srcC = R(3); rd = self.AB + self.srcC
        elif mn.startswith('ds_read'):
            self.kind = 'ds'; wr = R(0); rd = R(1)
        elif mn.startswith('ds_write'):
            self.kind = 'dsw'; rd = allr(0)
        elif mn.startswith('buffer_load') or mn.startswith('global_load'):
            if 'lds' in mods:
                self.kind = 'dma'; rd = allr(0) + [('m0', 0)]
            else:
                self.kind = 'vld'; wr = R(0); rd = allr(1)
                if 'd16' in mn: rd += R(0)
        elif mn.startswith('buffer_store') or mn.startswith('global_store') or mn.startswith('buffer_atomic') or mn.startswith('global_atomic'):
            self.kind = 'vst'; rd = allr(0)
        elif mn.startswith('s_load'):
            self.kind = 'smem'; wr = R(0); rd = allr(1)
        elif mn in ('s_memtime', 's_memrealtime'):
            self.kind = 'smem'; wr = R(0)
        elif mn == 's_waitcnt':
            self.kind = 'wait'
        elif mn == 's_barrier':
            self.kind = 'barrier'
        elif mn == 's_nop':
            self.kind = 'nop'; self.states = int(ops[0], 0) + 1
        elif mn in ('s_branch', 's_endpgm', 's_sleep', 's_setprio') or mn.startswith('s_cbranch'):
            self.kind = 'ctl'
            if 'vcc' in mn: rd = [('vcc', 0)]
            if 'scc' in mn: rd = [('scc', 0)]
        elif mn.startswith('s_cmp'):
            self.kind = 'salu'; rd = allr(0); wr = [('scc', 0)]
        elif mn.startswith('s_'):
            self.kind = 'salu'; wr = R(0); rd = allr(1)
            if mn.startswith(('s_add', 's_sub', 's_and', 's_or', 's_xor', 's_lshl', 's_lshr')): wr = wr + [('scc', 0)]
            if mn.startswith(('s_cselect', 's_addc', 's_subb')): rd = rd + [('scc', 0)]
            if 'saveexec' in mn: wr = wr + [('exec', 0)]
        elif mn.startswith('v_'):
            self.kind = 'trans' if mn in TRANS else 'valu'
            wr = R(0); rd = allr(1)
            if mn.startswith('v_permlane') or mn.startswith('v_swap'):
                wr = R(0) + R(1); rd = R(0) + R(1)
            if mn.startswith(('v_fmac', 'v_writelane')): rd = rd + R(0)
            if mn.startswith('v_cndmask') and len(ops) == 3: rd = rd + [('vcc', 0)]
        else:
            raise ValueError('unknown instr ' + text)
        self.rd = rd; self.wr = wr

def W(cnt, need):
    i = I('s_waitcnt placeholder'); i.kind = 'wait'; i.need = (cnt, need); return i

def need_regs(*rs):
    s = set()
    for r in rs: s.update(regs_of(r))
    return lambda op: any(x in s for x in op.wr)
def need_tag(f):
    return lambda op: op.tag is not None and f(op.tag)
need_all = lambda op: True

class Prog:
    def __init__(self):
        self.order = []; self.static = {}; self.trace = []
    def place(self, name):
        if name not in self.order: self.order.append(name)
    def run(self, name, instrs):
        instrs = [x if isinstance(x, I) else I(x) for x in instrs]
        if name in self.static:
            st = self.static[name]
            assert len(st) == len(instrs), (name, len(st), len(instrs))
            for a, b in zip(st, instrs):
                assert a.text == b.text, (name, a.text, b.text)
        else:
            self.static[name] = instrs
            self.place(name)
        self.trace.append((name, instrs))
    def add_static(self, name, instrs):
        instrs = [x if isinstance(x, I) else I(x) for x in instrs]
        self.static[name] = instrs; self.place(name)

VM = ('dma', 'vld', 'vst'); LG = ('ds', 'dsw')

def parse_wait(text):
    vm = re.search(r'vmcnt\((\d+)\)', text); lg = re.search(r'lgkmcnt\((\d+)\)', text)
    return (int(vm.group(1)) if vm else None, int(lg.group(1)) if lg else None)

def resolve_waits(traces):
    res = {}
    for _pass in range(3):
        changed = False
        for trace in traces:
            q = {'vm': [], 'lgkm': []}
            for name, ins in trace:
                for k, op in enumerate(ins):
                    if op.kind in VM: q['vm'].append(op)
                    elif op.kind in LG: q['lgkm'].append(op)
                    elif op.kind == 'smem': q['lgkm'].append(op)
                    elif op.kind == 'wait':
                        if op.need is not None:
                            c, pred = op.need
                            last = -1
                            for j, o in enumerate(q[c]):
                                if pred(o): last = j
                            n = len(q[c]) - 1 - last
                            mx = 63 if c == 'vm' else 15
                            if last < 0: n = mx
                            n = min(n, mx)
                            key = (name, k)
                            if key not in res or n < res[key]:
                                res[key] = n; changed = True
                            n = res[key]
                            if len(q[c]) > n: q[c] = q[c][len(q[c]) - n:] if n else []
                        else:
                            vm, lg = parse_wait(op.text)
                            if vm is not None and len(q['vm']) > vm: q['vm'] = q['vm'][len(q['vm']) - vm:] if vm else []
                            if lg is not None and len(q['lgkm']) > lg: q['lgkm'] = q['lgkm'][len(q['lgkm']) - lg:] if lg else []
        if not changed: break
    return res

def wait_text(op, n):
    c = op.need[0]
    return f"s_waitcnt vmcnt({n})" if c == 'vm' else f"s_waitcnt lgkmcnt({n})"

def check(trace, res, private=lambda region: False, verbose=True):
    errs = []
    q = {'vm': [], 'lgkm': []}
    pend = {}
    t = 0; n = 0; last_mfma = -100
    lastw = {}
    lastC = {}
    laststore = {}
    nbar = 0
    dma_done = {}
    rd_state = {}
    cur_ver = {}
    def retire(c, keep):
        while len(q[c]) > keep:
            o = q[c].pop(0)
            for r in o.wr:
                if pend.get(r) is o: del pend[r]
            if o.kind == 'dma' and o.tag and o.tag[0] == 'lds':
                d = dma_done[o.tag[1:3]]; d[1] += 1; d[2] = nbar
            if o.kind == 'dsw' and o.tag and o.tag[0] == 'lds':
                d = dma_done[o.tag[1:3]]; d[1] += 1; d[2] = nbar
            if o.kind == 'ds' and o.src:
                d = rd_state[o.src]; d[0] -= 1; d[1] = nbar
    for name, ins in trace:
        for k, op in enumerate(ins):
            if op.kind == 'pseudo': continue
            where = f"{name}[{k}] {op.text}"
            if op.kind == 'mfma':
                t = max(t, last_mfma + 16)
            for r in op.rd + op.wr:
                if r in pend and not (op.kind in ('vld',) and 'd16' in op.mn):
                    errs.append(f"use of pending load reg {r}: {where} (load: {pend[r].text})")
            isv = op.kind in ('valu', 'trans')
            if ('scc', 0) in op.rd and ('scc', 0) in lastw:
                wmn = lastw[('scc', 0)][3].mn
                ok = wmn.startswith('s_cmp') if not op.mn.startswith('s_addc') else wmn == 's_add_u32'
                if op.mn.startswith('s_addc') and lastw[('scc', 0)][1] != n - 1: ok = False
                if not ok: errs.append(f"SCC from {lastw[('scc',0)][3].text}: {where}")
            for r in set(op.rd):
                if r in lastw:
                    wk, wn, wt, wop = lastw[r]
                    gap = n - wn - 1
                    if wk == 'mfma':
                        if op.kind == 'mfma':
                            if r in op.AB and t - wt < 40: errs.append(f"mfma D->AB {r}: {where}")
                            if r in op.srcC and op.srcC != wop.wr and t - wt < 32: errs.append(f"mfma D->C overlap {r}: {where}")
                        elif t - wt < 40: errs.append(f"mfma D->read {r} dt={t-wt}: {where}")
                    elif wk in ('valu', 'trans'):
                        if op.kind == 'mfma' and gap < 2: errs.append(f"valu->mfma {r}: {where}")
                        if wk == 'trans' and op.kind == 'valu' and gap < 1: errs.append(f"trans->valu {r}: {where}")
                        if op.mn.startswith('v_permlane') and gap < 2: errs.append(f"valu->permlane {r}: {where}")
                        if op.mn.startswith(('v_readfirstlane', 'v_readlane')) and r[0] == 'v' and gap < 1: errs.append(f"valu->readlane {r}: {where}")
                        if r[0] in ('s', 'vcc'):
                            if op.kind in VM and gap < 5: errs.append(f"valu sgpr->vmem {r}: {where}")
                            if isv and gap < 2: errs.append(f"valu sgpr->valu {r}: {where}")
                            if op.kind in ('salu', 'ctl') and gap < 2: errs.append(f"valu sgpr->salu {r}: {where}")
                    elif wk == 'salu':
                        if r == ('m0', 0) and op.kind == 'dma' and gap < 1: errs.append(f"m0->dma: {where}")
            for r in set(op.wr):
                if r in lastw and lastw[r][0] == 'mfma' and op.kind != 'mfma' and t - lastw[r][2] < 40:
                    errs.append(f"mfma D->write (WAW) {r}: {where}")
                if isv and r in lastC and t - lastC[r] < 20: errs.append(f"mfma C read->valu write {r}: {where}")
                if r in laststore and n - laststore[r] - 1 < 2: errs.append(f"store data WAR {r}: {where}")
            if op.kind in ('dma', 'dsw') and op.tag and op.tag[0] == 'lds':
                key = op.tag[1:3]; region = key[0]
                dma_done.setdefault(key, [0, 0, -1])[0] += 1
                for (rg, ver), st in rd_state.items():
                    if rg == region and ver != key[1]:
                        if st[0] > 0: errs.append(f"LDS WAR: write {key} while reads of {(rg,ver)} outstanding: {where}")
                        elif not private(region) and st[1] >= nbar: errs.append(f"LDS WAR: write {key} w/o barrier after reads of {(rg,ver)}: {where}")
                for (rg, ver), d in dma_done.items():
                    if rg == region and ver != key[1]:
                        if d[0] != d[1] and not private(region): errs.append(f"LDS WAW: write {key} while writes of {(rg,ver)} outstanding: {where}")
                        elif not private(region) and d[2] >= nbar: errs.append(f"LDS WAW: write {key} w/o barrier after writes {(rg,ver)}: {where}")
                cur_ver[region] = key[1]
            if op.kind == 'ds' and op.src:
                key = op.src
                d = dma_done.get(key)
                if d is None: errs.append(f"LDS read of never-written {key}: {where}")
                else:
                    if d[0] != d[1]: errs.append(f"LDS RAW: read {key} with {d[0]-d[1]} writes outstanding: {where}")
                    elif not private(key[0]) and d[2] >= nbar: errs.append(f"LDS RAW: read {key} w/o barrier: {where}")
                    if cur_ver.get(key[0]) != key[1]: errs.append(f"LDS read {key} but region holds {cur_ver.get(key[0])}: {where}")
                st = rd_state.setdefault(key, [0, -1]); st[0] += 1
            if op.kind in VM:
                q['vm'].append(op)
                if len(q['vm']) > 63: retire('vm', 63)
            if op.kind in LG or op.kind == 'smem': q['lgkm'].append(op)
            if op.kind in ('vld', 'ds', 'smem'):
                for r in op.wr: pend[r] = op
            if op.kind == 'wait':
                if op.need is not None:
                    retire(op.need[0], res[(name, k)])
                else:
                    vm, lg = parse_wait(op.text)
                    if vm is not None: retire('vm', vm)
                    if lg is not None: retire('lgkm', lg)
            if op.kind == 'barrier': nbar += 1
            for r in op.wr: lastw[r] = (op.kind, n, t, op)
            if op.kind == 'mfma':
                for r in op.srcC: lastC[r] = t
                last_mfma = t
            if op.kind == 'vst' and ('x4' in op.mn or 'x3' in op.mn):
                for r in regs_of(op.text.split(None, 1)[1].split(',')[0]): laststore[r] = n
            n += op.states; t += 4 * op.states
    return errs

def emit(prog, res):
    out = []
    for name in prog.order:
        out.append(f"; ---- block {name}")
        for k, op in enumerate(prog.static[name]):
            if op.kind == 'wait' and op.need is not None:
                out.append("    " + wait_text(op, res[(name, k)]))
            elif op.kind == 'pseudo':
                out.append(op.text)
            else:
                out.append("    " + op.text)
    return "\n".join(out)

def weave(mfmas, fill):
    out = []
    for g, m in enumerate(mfmas):
        out.append(m)
        out.extend(fill.get(g, []))
    assert all(0 <= g < len(mfmas) for g in fill), sorted(fill)
    return out
```

```python
import sys, math, struct
from dsl import *

NAME = "concat_heads__mha_block_cached__mha_block_cached__near_ridge_kernel"
OPT = dict(stamps=False, fine=False, noq=False, nowo=False, noo=False, nokv=False, pf=True, thr=0x4e800000)

def v(b, n=1): return f"v{b}" if n == 1 else f"v[{b}:{b+n-1}]"
def a(b, n=1): return f"a{b}" if n == 1 else f"a[{b}:{b+n-1}]"
def M(d, A, B, C): return I(f"v_mfma_f32_16x16x32_bf16 {d}, {A}, {B}, {C}")

V_XO = [2, 3, 4]; V_WQO = [5, 6, 7, 38]
V_KV = [8, 9]
V_KA = [10, 14]; V_VA = [18, 26]
V_ONES = 34
V_NEGM = 40
V_QXA = 40; V_QWA = 41
V_PFW = 45; V_PFX = 46
ACC = 64
KF = 64; VF = [96, 128]; SB = [160, 168]; PB = [176, 180]
TMPA = 184; TMPB = 248
def LREG(g): return 208 + 4 * g if g < 4 else 240 + 4 * (g - 4)
def QF(g, ks):
    if g < 4: return a(192 + 16 * g + 4 * ks, 4)
    return v((192 if g == 4 else 224) + 4 * ks, 4)
def OACC(i, g): return (g * 8 + i) * 4
XB = [192, 216]; WA = 240

SX, SWQ, SKV, SO, SWP, SOUT, SDBG = 8, 12, 16, 20, 24, 28, 32
S_C, S_J = 36, 37
S_XS, S_WS, S_KS = 38, 39, 40
S_MX, S_MW, S_MK = 41, 42, 43
S_CNT, S_ME = 44, 45
S_OS = 48
S_OPA, S_OPB = 49, 50
SWO = 60
S_KP, S_VP = 72, 74
def srd(b): return f"s[{b}:{b+3}]"
SLOT = [0, 32768, 65536, 98304]; XSLOT = 131072
WPOFF = 0x3000000
NT = " nt"

def stamp(fine=False):
    if not OPT['stamps'] or (fine and not OPT['fine']): return []
    return ["s_memtime s[58:59]", "s_waitcnt lgkmcnt(0)", "s_mov_b32 s59, m0", "s_mov_b32 m0, s69", "s_nop 0",
            "v_writelane_b32 v39, s58, m0", "s_mov_b32 m0, s59", "s_add_u32 s69, s69, 1"]

def dma(voff, sr, soff, off, region, ver, flags=""):
    return I(f"buffer_load_dwordx4 {v(voff)}, {srd(sr)}, s{soff} offen offset:{off}{flags} lds", tag=('lds', region, ver))
def touch(voff, sr, soff):
    i = I(f"buffer_load_dword v0, {v(voff)}, {srd(sr)}, s{soff} offen"); i.wr = []; return i

def kind(x): return (x if isinstance(x, I) else I(x)).kind

class Weave:
    def __init__(self): self.mf = []; self.F = {}
    def put(self, g, *ins): self.F.setdefault(g, []).extend(ins)
    def putf(self, g, *ins): self.F.setdefault(g, [])[0:0] = list(ins)
    def extend(self, other):
        n = len(self.mf); self.mf += other.mf
        for g, l in other.F.items(): self.F.setdefault(n + g, []).extend(l)
        return n
    def cap(self, g):
        ks = [kind(x) for x in self.F.get(g, [])]
        if any(k in ('dma', 'vld', 'vst', 'barrier') for k in ks): return 0
        c = 2
        if any(k in ('ds', 'dsw') for k in ks): c -= 1; ns = sum(k in ('salu', 'wait') for k in ks)
        else: ns = max(0, sum(k in ('salu', 'wait') for k in ks) - 1)
        return c - ns - sum(k == 'valu' for k in ks) - 2 * sum(k == 'trans' for k in ks)
    def empty(self, g):
        return all(kind(x) in ('salu', 'wait') for x in self.F.get(g, [])) and len(self.F.get(g, [])) <= 1
    def place(self, items, start=0, end=None, mingap=0):
        g = start; end = len(self.mf) if end is None else end; lastv = -10**9
        for x in items:
            k = kind(x)
            if k == 'salu':
                self.put(g, x); continue
            if k in ('vst', 'vld', 'dma'):
                if self.F.get(g) and not self.empty(g): g += 1
                while g < end and (not self.empty(g) or g - lastv < mingap): g += 1
                assert g < end, "no room"
                self.put(g, x); lastv = g; g += 1
            else:
                while g < end and self.cap(g) < 1: g += 1
                assert g < end, "no room"
                self.put(g, x)
        return g
    def out(self): return weave(self.mf, self.F)

def wo_voffsets(dst):
    p = []
    for k in range(5):
        p += [f"v_add_u32 v60, {64*k}, v1", "v_mul_u32_u24 v61, 3277, v60", "v_lshrrev_b32 v61, 16, v61",
              "v_mul_u32_u24 v62, 20, v61", "v_sub_u32 v62, v60, v62", "v_bfe_u32 v63, v61, 2, 1", "v_lshlrev_b32 v63, 1, v63",
              "v_xor_b32 v62, v62, v63", "v_lshlrev_b32 v62, 4, v62", "v_mul_u32_u24 v61, 1280, v61", f"v_add_u32 v{dst+k}, v61, v62"]
        if 0 < k < 4: p.append(f"v_subrev_u32 v{dst+k}, {1024*k}, v{dst+k}")
    return p

def prologue():
    p = []
    A = p.append
    A("s_cmp_ge_u32 s2, 256")
    A("s_cbranch_scc1 L_end")
    A("v_lshrrev_b32 v2, 6, v0")
    A("v_and_b32 v1, 63, v0")
    A("s_and_b32 s52, s2, 7")
    A("v_readfirstlane_b32 s4, v2")
    A("s_lshr_b32 s53, s2, 3")
    A("s_lshr_b32 s54, s53, 3")
    A("s_lshl_b32 s36, s52, 2")
    A("s_add_u32 s36, s36, s54")
    A("s_and_b32 s37, s53, 7")
    A("s_lshr_b32 s55, s36, 4")
    A("s_and_b32 s56, s36, 15")
    A("s_lshr_b32 s5, s4, 1")
    A("s_and_b32 s6, s4, 1")
    A("s_mul_i32 s57, s55, 40")
    A("s_add_u32 s58, s0, s57")
    A("s_addc_u32 s59, s1, 0")
    A("s_load_dwordx2 s[8:9], s[58:59], 0")
    A("s_load_dwordx4 s[72:75], s[58:59], 8")
    A("s_load_dwordx2 s[12:13], s[58:59], 24")
    A("s_load_dwordx2 s[60:61], s[58:59], 32")
    A("s_load_dwordx2 s[28:29], s[0:1], 80")
    A("s_load_dwordx2 s[32:33], s[0:1], 88")
    A("s_load_dwordx2 s[20:21], s[0:1], 96")
    A("v_lshrrev_b32 v40, 4, v1")
    A("v_and_b32 v41, 15, v1")
    A("v_lshrrev_b32 v42, 2, v1")
    A("v_and_b32 v43, 3, v1")
    A("v_bfe_u32 v44, v1, 2, 2")
    A("v_and_b32 v45, 1, v40")
    A("v_lshlrev_b32 v45, 1, v45")
    A("v_xor_b32 v45, v45, v43")
    A("v_lshlrev_b32 v45, 4, v45")
    A("v_mul_u32_u24 v46, 1280, v42")
    A("s_mul_i32 s52, s4, 61440")
    A("v_add3_u32 v2, v45, v46, s52")
    A("v_add_u32 v3, 19456, v2")
    A("v_add_u32 v4, 38912, v2")
    A("v_lshlrev_b32 v45, 2, v40")
    A("v_xor_b32 v45, v45, v41")
    A("v_lshlrev_b32 v45, 4, v45")
    A("v_lshl_add_u32 v45, v40, 13, v45")
    A("s_lshl_b32 s52, s6, 17")
    A("v_add_u32 v5, s52, v45")
    A("v_add_u32 v6, 31744, v5")
    A("v_add_u32 v7, 63488, v5")
    A("v_add_u32 v38, 95232, v5")
    p += wo_voffsets(48)
    A("s_mul_i32 s41, s4, 3072")
    A("s_lshl_b32 s42, s4, 12")
    A("s_add_u32 s42, s42, 12288")
    A("s_lshl_b32 s43, s4, 13")
    A("s_mov_b32 s7, 0")
    if OPT['stamps']:
        A("s_memrealtime s[68:69]"); A("v_mov_b32 v39, 0")
    A("s_waitcnt lgkmcnt(0)")
    if OPT['stamps']: A("s_mov_b32 s69, 0")
    A("s_mul_i32 s52, s56, 245760")
    A("s_add_u32 s8, s8, s52")
    A("s_addc_u32 s9, s9, 0")
    A("s_mov_b32 s10, 245760")
    A("s_mov_b32 s11, 0x20000")
    A("s_lshl_b32 s52, s37, 1")
    A("s_add_u32 s52, s52, s5")
    A("s_lshl_b32 s53, s52, 8")
    A("s_add_u32 s12, s12, s53")
    A("s_addc_u32 s13, s13, 0")
    A("s_sub_u32 s14, 5242880, s53")
    A("s_mov_b32 s15, 0x20000")
    if OPT['noq']: A("s_mov_b32 s10, 0"); A("s_mov_b32 s14, 4096")
    A("s_lshl_b32 s57, s56, 3")
    A("s_add_u32 s57, s57, s37")
    A("s_mul_i32 s53, s57, 40960")
    A("s_mul_i32 s54, s4, 320")
    A("s_add_u32 s53, s53, s54")
    A("s_add_u32 s60, s60, s53")
    A("s_addc_u32 s61, s61, 0")
    A(f"s_mov_b32 s62, {31*1280+320}")
    A("s_mov_b32 s63, 0x20000")
    p += stamp()
    p += q_stage_loads(0, 0, 7)
    A("s_mul_i32 s51, s4, 10240")
    A("s_add_u32 s51, s51, 98304")
    for h in range(2):
        A(f"s_mov_b32 s53, {16*1280*h}")
        A(f"s_add_u32 m0, s51, {5120*h}"); A("s_nop 0")
        for k in range(4): A(dma(48+k, SWO, 53, 1024*k, 'PK', 0, NT))
        A(f"s_add_u32 m0, s51, {5120*h+4096}"); A("s_nop 0")
        A(dma(52, SWO, 53, 0, 'PK', 0, NT))
    A("s_lshl_b32 s53, s56, 5")
    A("s_add_u32 s53, s53, s52")
    A("s_lshl_b32 s53, s53, 17")
    A("s_add_u32 s72, s72, s53"); A("s_addc_u32 s73, s73, 0")
    A("s_add_u32 s74, s74, s53"); A("s_addc_u32 s75, s75, 0")
    A("s_cmp_eq_u32 s6, 0")
    A("s_cselect_b32 s16, s72, s74")
    A("s_cselect_b32 s17, s73, s75")
    A("s_mov_b32 s18, 131072")
    A("s_mov_b32 s19, 0x20000")
    if OPT['nokv']: A("s_mov_b32 s18, 0")
    A("s_mul_i32 s53, s55, 5242880")
    A(f"s_add_u32 s53, s53, {WPOFF:#x}")
    A("s_add_u32 s24, s20, s53"); A("s_addc_u32 s25, s21, 0")
    A("s_mov_b32 s26, 5242880")
    A("s_mov_b32 s27, 0x20000")
    A("s_mul_i32 s49, s4, 1310720")
    A("s_mul_i32 s53, s57, 10240")
    A("s_add_u32 s49, s49, s53")
    A("s_mul_i32 s53, s36, 1572864")
    A("s_add_u32 s20, s20, s53")
    A("s_addc_u32 s21, s21, 0")
    A("s_mov_b32 s22, 1572864")
    A("s_mov_b32 s23, 0x20000")
    A("s_lshl_b32 s53, s6, 5")
    A("s_add_u32 s53, s53, s52")
    A("s_mul_i32 s48, s53, 24576")
    A("s_lshr_b32 s53, s37, 1")
    A("s_mul_i32 s53, s53, 320")
    A("s_and_b32 s54, s37, 1")
    A("s_mul_i32 s54, s54, 96")
    A("s_mul_i32 s57, s56, 192")
    A("s_add_u32 s54, s54, s57")
    A("s_mul_i32 s54, s54, 2560")
    A("s_mul_i32 s57, s55, 1280")
    A("s_add_u32 s54, s54, s57")
    A("s_add_u32 s54, s54, s53")
    A("s_add_u32 s28, s28, s54")
    A("s_addc_u32 s29, s29, 0")
    A(f"s_mov_b32 s30, {95*2560+320}")
    A("s_mov_b32 s31, 0x20000")
    A("s_mov_b32 s34, 256")
    A("s_mov_b32 s35, 0x20000")
    cb = struct.unpack('<I', struct.pack('<f', math.log2(math.e) / math.sqrt(128.0)))[0]
    A(f"s_mov_b32 s46, {cb:#x}")
    A(f"s_mov_b32 s47, {cb:#x}")
    A("v_lshlrev_b32 v45, 1, v40")
    A("v_xor_b32 v45, v45, v41")
    A("v_lshlrev_b32 v45, 4, v45")
    A("v_lshl_add_u32 v8, v40, 8, v45")
    A("v_xor_b32 v9, 0x80, v8")
    A("v_and_b32 v45, 7, v41")
    A("v_lshlrev_b32 v45, 1, v45")
    A("v_xor_b32 v45, v45, v40")
    A("v_lshlrev_b32 v45, 4, v45")
    A("v_lshl_add_u32 v45, v41, 8, v45")
    A("s_lshl_b32 s52, s5, 14")
    A("v_add_u32 v10, s52, v45")
    for ks in range(1, 4): A(f"v_xor_b32 v{10+ks}, {64*ks}, v10")
    for ks in range(4): A(f"v_add_u32 v{14+ks}, 0x10000, v{10+ks}")
    A("v_lshl_add_u32 v45, v40, 2, v44")
    A("v_and_b32 v46, 7, v45")
    A("v_lshlrev_b32 v46, 1, v46")
    A("v_lshrrev_b32 v47, 1, v43")
    A("v_xor_b32 v46, v46, v47")
    A("v_lshlrev_b32 v46, 4, v46")
    A("v_lshl_add_u32 v46, v45, 8, v46")
    A("v_and_b32 v47, 1, v43")
    A("v_lshl_add_u32 v46, v47, 3, v46")
    A("s_add_u32 s52, s52, 8192")
    A("v_add_u32 v18, s52, v46")
    for i in range(1, 8): A(f"v_xor_b32 v{18+i}, {32*i}, v18")
    for i in range(8): A(f"v_add_u32 v{26+i}, 0x10000, v{18+i}")
    A("v_mul_u32_u24 v53, 320, v45")
    A("v_lshrrev_b32 v54, 1, v43")
    A("v_lshl_add_u32 v53, v54, 4, v53")
    A("v_lshl_add_u32 v53, v47, 3, v53")
    A("v_add_u32 v53, s51, v53")
    A("v_and_b32 v54, 1, v40")
    A("v_lshl_add_u32 v55, v54, 5, v53")
    A("v_xor_b32 v54, 1, v54")
    A("v_lshl_add_u32 v56, v54, 5, v53")
    A("v_lshlrev_b32 v57, 4, v1")
    for s in (1, 2): p += q_stage_loads(0, s, 7)
    p += q_addr_setup()
    p += pf_ahead(4, 8)
    A(W('vm', need_tag(lambda t: t[1] == 'PK')))
    for nt in range(10):
        for t in range(2):
            A(I(f"ds_read_b64_tr_b16 {a(4*nt+2*t,2)}, v{55+(nt&1)} offset:{5120*t+64*(nt>>1)}", src=('PK', 0)))
    A("s_waitcnt lgkmcnt(0)")
    return p

def pack_stores():
    L = []
    for nt in range(10):
        if nt % 4 == 0: L.append(f"s_add_u32 s51, s{S_OPA}, {1024*nt}")
        L.append(I(f"buffer_store_dwordx4 {a(4*nt,4)}, v57, {srd(SWP)}, s51 offen offset:{1024*(nt%4)} sc1", tag=('pst', 0, 0)))
    return L

def q_stage_loads(gen, s, npieces):
    reg = f"R{s&3}"; ver = ('Q', gen, s)
    p = [f"s_mov_b32 s{S_XS}, {64*s}", f"s_mov_b32 s{S_WS}, {262144*s}", f"s_add_u32 m0, s{S_MX}, {SLOT[s&3]}", "s_nop 0"]
    for k in range(3): p.append(dma(V_XO[k], SX, S_XS, 1024*k, reg, ver))
    p += [f"s_add_u32 m0, s{S_MW}, {SLOT[s&3]}", "s_nop 0"]
    for k in range(npieces - 3): p.append(dma(V_WQO[k], SWQ, S_WS, 1024*k, reg, ver))
    return p

def pf_ahead(s0, s1):
    if not OPT['pf']: return []
    p = []
    for s in range(s0, s1):
        p += [f"s_mov_b32 s53, {262144*s}", touch(V_PFW, SWQ, 53)]
        if s % 2 == 0: p += [f"s_mov_b32 s53, {64*s}", touch(V_PFX, SX, 53)]
    return p

def qA(mt, gen, s):
    ks, t = mt >> 1, mt & 1
    d = WA + 4 * (mt & 3)
    return [I(f"ds_read_b64_tr_b16 {a(d+2*hh,2)}, {v(V_QWA+ks)} offset:{1024*hh+8*t}", src=(f"R{s&3}", ('Q', gen, s))) for hh in range(2)]
def qB(g, gen, s):
    return I(f"ds_read_b128 {a(XB[s&1]+4*g,4)}, {v(V_QXA)} offset:{1024*g}", src=(f"R{s&3}", ('Q', gen, s)))

def q_addr_setup():
    p = []; A = p.append
    A("v_lshrrev_b32 v47, 4, v1")
    A("v_bfe_u32 v48, v1, 2, 1")
    A("v_lshlrev_b32 v48, 1, v48")
    A("v_xor_b32 v48, v48, v47")
    A("v_lshlrev_b32 v48, 4, v48")
    A("v_and_b32 v49, 15, v1")
    A("v_lshl_add_u32 v48, v49, 6, v48")
    A("s_mul_i32 s52, s6, 6144")
    A(f"v_add_u32 v{V_QXA}, s52, v48")
    A("v_bfe_u32 v48, v1, 2, 2")
    A("v_and_b32 v49, 3, v1")
    A("v_lshl_add_u32 v49, v48, 2, v49")
    A("v_lshlrev_b32 v49, 4, v49")
    A("v_lshl_add_u32 v48, v47, 3, v48")
    A("v_lshl_add_u32 v49, v48, 8, v49")
    A("s_lshl_b32 s52, s5, 13")
    A("s_add_u32 s52, s52, 12288")
    A(f"v_add_u32 v{V_QWA}, s52, v49")
    for ks in range(1, 4): A(f"v_xor_b32 v{V_QWA+ks}, {64*ks}, v{V_QWA}")
    A("s_and_b32 s52, s36, 3"); A("s_lshl_b32 s52, s52, 1"); A("s_add_u32 s52, s52, s6"); A("s_lshl_b32 s52, s52, 15")
    A("v_lshrrev_b32 v47, 1, v1"); A("v_lshlrev_b32 v47, 13, v47"); A("v_and_b32 v48, 1, v1"); A("v_lshl_add_u32 v47, v48, 7, v47")
    A("v_add_u32 v47, s52, v47")
    A("v_bfrev_b32 v48, 1")
    A("v_cmp_gt_u32 vcc, 8, v1"); A("s_nop 1")
    A(f"v_cndmask_b32 v{V_PFW}, v48, v47, vcc")
    A("s_lshl_b32 s52, s37, 2"); A("s_add_u32 s52, s52, s4"); A("s_mul_i32 s52, s52, 7680")
    A("v_mul_u32_u24 v47, 1280, v1"); A("v_add_u32 v47, s52, v47")
    A("v_cmp_gt_u32 vcc, 6, v1"); A("s_nop 1")
    A(f"v_cndmask_b32 v{V_PFX}, v48, v47, vcc")
    return p

def q_pre(gen):
    p = []; A = p.append
    A(f"s_mov_b32 s{S_KS}, 0")
    A(f"s_add_u32 s{S_ME}, s{S_MK}, {XSLOT}")
    A(f"s_mov_b32 s{S_CNT}, {3 if gen == 0 else 1}")
    A(W('vm', need_tag(lambda t: t[2] == ('Q', gen, 0))))
    A("s_barrier")
    p += stamp()
    for mt in range(3): p += qA(mt, gen, 0)
    for g in range(6): A(qB(g, gen, 0))
    p += q_stage_loads(gen, 3, 5)
    A(W('lgkm', need_regs(a(WA,4), a(XB[0],12))))
    return p

def kv_batch(gen, tile):
    reg = f"R{(tile-1)&3}"; ver = ('KV', gen, tile); base = SLOT[(tile-1)&3]
    L = []
    for grp in range(2):
        L.append(f"s_add_u32 m0, s{S_MK}, {base+4096*grp}")
        for k in range(4): L.append(dma(V_KV[k&1], SKV, S_KS, 1024*k, reg, ver, NT))
        L.append(f"s_add_u32 s{S_KS}, s{S_KS}, 4096")
    return L

def q_step(gen, s):
    w = Weave(); put = w.put
    for mt in range(8):
        for g in range(6):
            d = v(ACC + 32*g + 4*mt, 4)
            w.mf.append(M(d, a(WA+4*(mt&3),4), a(XB[s&1]+4*g,4), "0" if s == 0 else d))
    last = s == 19
    for mt in range(3, 8):
        r = qA(mt, gen, s); put(6*(mt-3), r[0]); put(6*(mt-3)+1, r[1])
    for mt in range(1, 8):
        put(6*mt-1, W('lgkm', need_regs(a(WA+4*(mt&3),4))))
    put(2, W('lgkm', need_regs(a(XB[s&1]+12,12))))
    if s <= 16:
        sp = s + 3
        put(3, dma(V_WQO[2], SWQ, S_WS, 2048, f"R{sp&3}", ('Q', gen, sp)))
        put(4, dma(V_WQO[3], SWQ, S_WS, 3072, f"R{sp&3}", ('Q', gen, sp)))
        put(8, f"s_add_u32 s{S_XS}, s{S_XS}, 64")
        put(9, f"s_add_u32 s{S_WS}, s{S_WS}, 262144")
    if s < 16:
        if (s & 1) == 0:
            put(14, f"s_mov_b32 m0, s{S_ME}")
            put(15, dma(V_KV[(s>>1)&1], SKV, S_KS, 0, 'X', ('KV', gen, 0), NT))
            put(16, f"s_add_u32 s{S_ME}, s{S_ME}, 1024")
            put(20, f"s_add_u32 s{S_KS}, s{S_KS}, 1024")
        if OPT['pf']:
            put(10, f"s_add_u32 s53, s{S_WS}, {4*262144}")
            put(21, touch(V_PFW, SWQ, 53))
            if (s & 1) == 1:
                put(14, f"s_add_u32 s54, s{S_XS}, {3*64}")
                put(15, touch(V_PFX, SX, 54))
    if not last:
        dl = SLOT[(s+1)&3] - SLOT[s&3]
        for k in range(5):
            ins = f"v_add_u32 v{V_QXA+k}, {dl:#x}, v{V_QXA+k}" if dl > 0 else f"v_subrev_u32 v{V_QXA+k}, {-dl:#x}, v{V_QXA+k}"
            put(26 + k//2, ins)
    nxt = ('Q', gen, s+1) if not last else ('KV', gen, 0)
    put(28, W('vm', need_tag(lambda t: t[2] == nxt)))
    put(30, W('lgkm', need_all), "s_barrier")
    if not last:
        r0 = qA(0, gen, s+1); r1 = qA(1, gen, s+1); r2 = qA(2, gen, s+1)
        put(31, r0[0]); put(32, r0[1]); put(36, r1[0]); put(37, r1[1]); put(42, r2[0]); put(43, r2[1])
        for g, gp in zip(range(6), (33, 34, 35, 38, 39, 40)): put(gp, qB(g, gen, s+1))
    if s <= 15:
        sp = s + 4; reg = f"R{sp&3}"; ver = ('Q', gen, sp)
        put(27, f"s_add_u32 m0, s{S_MX}, {SLOT[sp&3]}")
        for k, gp in enumerate((41, 44, 45)): put(gp, dma(V_XO[k], SX, S_XS, 1024*k, reg, ver))
        put(45, f"s_add_u32 m0, s{S_MW}, {SLOT[sp&3]}")
        put(46, dma(V_WQO[0], SWQ, S_WS, 0, reg, ver))
        put(47, dma(V_WQO[1], SWQ, S_WS, 1024, reg, ver))
    if s >= 16:
        L1 = kv_batch(gen, 1); L2 = kv_batch(gen, 2)
        if s == 16: put(27, L1[0]); put(41, L1[1]); put(44, L1[2]); put(46, L1[3])
        if s == 17: put(3, L1[4], L1[5], L1[6]); put(9, L1[7]); put(15, L1[8]); put(21, L1[9]); put(41, L1[10], L1[11]); put(44, L2[0]); put(46, L2[1])
        if s == 18: put(3, L2[2]); put(9, L2[3]); put(21, L2[4], L2[5], L2[6]); put(41, L2[7]); put(45, L2[8])
        if s == 19: put(3, L2[9]); put(15, L2[10], L2[11])
    if not last: put(47, W('lgkm', need_regs(a(WA,4), a(XB[(s+1)&1],12))))
    return w

V_RC0 = 58; V_OT = 47; V_OPK = 55 - 0
def o_unit(g, sp, rc, tb, pk, voff, gen, pkmul=False):
    q = []
    for k in range(8): q.append(f"v_accvgpr_read_b32 v{tb+k}, a{OACC(2*sp, g)+k}")
    if pkmul:
        e = rc & ~1; sel = rc & 1
        for k in range(4): q.append(f"v_pk_mul_f32 {v(tb+2*k,2)}, {v(tb+2*k,2)}, {v(e,2)} op_sel:[0,{sel}] op_sel_hi:[1,{sel}]")
    else:
        for k in range(8): q.append(f"v_mul_f32 v{tb+k}, v{rc}, v{tb+k}")
    for k in range(4): q.append(f"v_cvt_pk_bf16_f32 v{pk+k}, v{tb+2*k}, v{tb+2*k+1}")
    return q
def o_store(g, sp, pk, voff, gen, sreg):
    off = (sp * 6 + g) * 1024
    return [f"s_add_u32 s{sreg}, s{S_OS}, {off & ~4095}",
            I(f"buffer_store_dwordx4 {v(pk,4)}, v{voff}, {srd(SO)}, s{sreg} offen offset:{off & 4095} sc1", tag=('ost', 0, gen))]

def q_first(gen):
    w = Weave()
    if gen == 0:
        for s in range(4): w.extend(q_step(0, s))
        w.place(pack_stores(), 0, None, mingap=12)
    else:
        for s in range(12): w.extend(q_step(1, s))
        gv = 0; gs = -1
        for g in range(6):
            for sp in range(4):
                u = o_unit(g, sp, V_RC0+g, 48, V_ONES, 57, 0)
                gv = w.place(u[:16], gv)
                gv = max(gv, gs + 2)
                gv = w.place(u[16:], gv)
                gs = gv + 1
                while not w.empty(gs): gs += 1
                w.put(gs, *o_store(g, sp, V_ONES, 57, 0, 51))
        print("   O-epilogue woven up to gap", gs, "of", len(w.mf))
    return w.out()

def kread(f, gen, tile, aset, off):
    kt, ks = f >> 2, f & 3
    reg = 'X' if tile == 0 else f"R{(tile-1)&3}"
    return I(f"ds_read_b128 {v(KF+4*f,4)}, {v(aset+ks)} offset:{off+4096*kt}", src=(reg, ('KV', gen, tile)))
def vread(i, t, gen, tile, aset, off):
    reg = 'X' if tile == 0 else f"R{(tile-1)&3}"
    return I(f"ds_read_b64_tr_b16 {v(VF[tile&1]+4*i+2*t,2)}, {v(aset+i)} offset:{off+4096*t}", src=(reg, ('KV', gen, tile)))

def rowmax_bcast(n):
    return [f"v_mov_b32 v{n+1}, v{n}", "s_nop 1", f"v_permlane32_swap_b32 v{n}, v{n+1}", f"v_max_f32 v{n}, v{n}, v{n+1}",
            f"v_mov_b32 v{n+1}, v{n}", "s_nop 1", f"v_permlane16_swap_b32 v{n}, v{n+1}", f"v_max_f32 v{n}, v{n}, v{n+1}",
            f"v_mul_f32 v{n}, -1.0, v{n}", f"v_mov_b32 v{n+1}, v{n}", f"v_mov_b32 v{n+2}, v{n}", f"v_mov_b32 v{n+3}, v{n}"]
def est_max(g):
    n = V_NEGM + 4*g
    return [f"v_max3_f32 v{n}, v{n}, v{n+1}, v{n+2}", f"v_max_f32 v{n}, v{n}, v{n+3}"] + rowmax_bcast(n)

def transition(gen):
    p = []; A = p.append
    p += stamp()
    L3 = kv_batch(gen, 3)
    A("s_cmp_eq_u32 s4, 0"); A("s_cbranch_scc1 L_sig0")
    A("L_nosig0:")
    A("s_add_u32 s12, s12, 4096"); A("s_addc_u32 s13, s13, 0")
    A("s_sub_u32 s14, s14, 4096")
    A("s_cmp_eq_u32 s7, 0"); A("s_cselect_b32 s14, s14, 0"); A("s_cselect_b32 s10, s10, 0")
    A(L3[0]); A("s_nop 1"); A(L3[1])
    def pack(g):
        b = ACC + 32*g; q = []
        for k in range(16): q.append(f"v_pk_mul_f32 {v(b+2*k,2)}, {v(b+2*k,2)}, s[46:47]")
        for k in range(16): q.append(f"v_cvt_pk_bf16_f32 v{b+k}, v{b+2*k}, v{b+2*k+1}")
        if g < 4:
            for k in range(16): q.append(f"v_accvgpr_write_b32 a{192+16*g+k}, v{b+k}")
        return q
    def est(g):
        d = v(V_NEGM+4*g, 4)
        return [M(d, v(KF+4*ks,4), QF(g, ks), "0" if ks == 0 else d) for ks in range(4)]
    p += pack(0)
    for ks in range(4): A(f"v_add_u32 v{52+ks}, 0x10000, v{V_KA[1]+ks}")
    for f in range(8): A(kread(f, gen, 0, 52, 0))
    A(L3[2])
    p += pack(1)
    for i in range(8): A(f"v_add_u32 v{56+i}, 0x10000, v{V_VA[1]+i}")
    for i in range(8):
        for t in range(2): A(vread(i, t, gen, 0, 56, 0))
    A(L3[3])
    A(W('lgkm', need_regs(v(KF, 16))))
    p += est(0); p += est(1)
    p += pack(2)
    A(L3[4]); A(L3[5]); A(L3[6])
    p += est_max(0); p += est_max(1)
    p += est(2)
    A(L3[7])
    p += pack(3)
    A(L3[8]); A("s_nop 0")
    p += est(3)
    p += pack(4)
    A(L3[9])
    p += est_max(2); p += est_max(3)
    p += est(4)
    p += pack(5)
    A(L3[10]); A(L3[11])
    p += est(5)
    p += est_max(4)
    for k in range(32): A(f"v_accvgpr_write_b32 a{OACC(0,5)+k}, 0")
    for k in range(4): A(f"v_mov_b32 v{LREG(5)+k}, 0")
    for i in range(4): A(f"v_mov_b32 v{V_ONES+i}, 0x3f803f80")
    p += est_max(5)
    A(W('lgkm', need_all))
    A(f"s_mov_b32 s{S_CNT}, 3")
    p += stamp()
    return p

EXPG = [7, 9, 11, 13, 15, 17, 19, 21]
CVTG = [10, 14, 18, 22]
def a_iter(gen, t):
    mf = []; base = {}
    groups = range(6) if t < 16 else [0]
    for g in groups:
        base[g] = len(mf)
        if t < 16:
            for kt in range(2):
                d = v(SB[g&1]+4*kt, 4)
                for ks in range(4):
                    mf.append(M(d, v(KF+4*(4*kt+ks),4), QF(g, ks), v(V_NEGM+4*g,4) if ks == 0 else d))
        pt, pg = (t, g-1) if g > 0 else (t-1, 5)
        if pt >= 0:
            z = (pt == 0 and pg < 5)
            for i in range(8):
                d = a(OACC(i, pg), 4)
                mf.append(M(d, v(VF[pt&1]+4*i,4), v(PB[pg&1],4), "0" if z else d))
            d = v(LREG(pg), 4)
            mf.append(M(d, v(V_ONES,4), v(PB[pg&1],4), "0" if z else d))
    return mf, base

def softmax_ops(g):
    e = [f"v_exp_f32 v{SB[g&1]+k}, v{SB[g&1]+k}" for k in range(8)]
    c = [f"v_cvt_pk_bf16_f32 v{PB[g&1]+k}, v{SB[g&1]+2*k}, v{SB[g&1]+2*k+1}" for k in range(4)]
    return e, c

def a_tile(gen, t):
    w = Weave(); w.mf, base = a_iter(gen, t)
    put, putf = w.put, w.putf
    short0 = (t == 0)
    def pos(g, rel):
        if rel >= 17: return pos(g+1, rel-17) if g < 5 else None
        return base[g] + rel
    if t > 0:
        e, c = softmax_ops(5)
        for k in range(8):
            if EXPG[k] >= 17: put(EXPG[k]-17, e[k])
        for k in range(4):
            if CVTG[k] >= 17: put(CVTG[k]-17, c[k])
    for g in range(6):
        e, c = softmax_ops(g)
        if g == 0 and short0:
            put(7, "s_nop 3", *e[:4])
            put(7, c[0], c[1])
            for k in range(4, 8): put(base[1] + (k-4), e[k])
            put(base[1]+4, c[2]); put(base[1]+5, c[3])
            continue
        for k in range(8):
            q = pos(g, EXPG[k])
            if q is not None: put(q, e[k])
        for k in range(4):
            q = pos(g, CVTG[k])
            if q is not None: put(q, c[k])
    if t > 0:
        for f in (2, 4, 6):
            putf(f-1, W('lgkm', need_regs(v(KF+4*f,8))))
    if t < 15:
        bg = 7 if short0 else 8
        putf(bg-1, W('vm', (need_all if t == 13 else need_tag(lambda x: x[2] == ('KV', gen, t+1)))))
        putf(bg, "s_barrier")
    else:
        putf(8, "s_barrier")
    if t < 15:
        sl = t & 3; ka = V_KA[sl >> 1]; va = V_VA[sl >> 1]; off = 32768 * (sl & 1)
        k = 0
        for g in range(1, 5):
            for rel in (1, 5, 10, 14):
                putf(base[g]+rel, vread(k >> 1, k & 1, gen, t+1, va, off)); k += 1
        for f, rel in enumerate((1, 3, 5, 6, 8, 10, 12, 14)):
            putf(base[5]+rel, kread(f, gen, t+1, ka, off))
        put(base[5]+16, W('lgkm', need_regs(v(KF,8))))
    dg = [(1, 3), (1, 8), (1, 16), (2, 6), (2, 12), (3, 3), (3, 8), (3, 16)]
    P_ = lambda k: base[dg[k][0]] + dg[k][1]
    if t <= 12:
        L = kv_batch(gen, t+4)
        putf(base[1]+2 if not short0 else base[1]+2, L[0])
        for k in range(4): putf(P_(k), L[1+k])
        putf(base[2]+7, L[5]); putf(base[2]+9, L[6])
        for k in range(4): putf(P_(4+k), L[7+k])
        putf(base[4]+0, L[11])
    else:
        s = t - 13; reg = f"R{s}"; ver = ('Q', gen+1, s)
        putf(base[0]+9, f"s_mov_b32 s{S_XS}, {64*s}")
        putf(base[0]+11, f"s_add_u32 m0, s{S_MX}, {SLOT[s]}")
        putf(base[0]+13, f"s_mov_b32 s{S_WS}, {262144*s}")
        for k in range(3): putf(P_(k), dma(V_XO[k], SX, S_XS, 1024*k, reg, ver))
        putf(base[2]+2, f"s_add_u32 m0, s{S_MW}, {SLOT[s]}")
        for k in range(4): putf(P_(3+k), dma(V_WQO[k], SWQ, S_WS, 1024*k, reg, ver))
    return w.out()

def a_drain(gen):
    mf, base = a_iter(gen, 16)
    e, c = softmax_ops(5)
    p = [e[5], e[6], e[7], c[2], c[3], "s_nop 1"] + mf
    p += [f"s_mov_b32 s52, {OPT['thr']:#x}",
          f"v_add_f32 v{TMPA+1}, v{LREG(0)}, v{LREG(1)}", f"v_add_f32 v{TMPA+2}, v{LREG(2)}, v{LREG(3)}",
          f"v_add_f32 v{TMPA+1}, v{TMPA+1}, v{LREG(4)}", f"v_add_f32 v{TMPA+1}, v{TMPA+1}, v{TMPA+2}", "s_nop 5",
          f"v_add_f32 v{TMPA+1}, v{TMPA+1}, v{LREG(5)}",
          f"v_cmp_nge_f32 vcc, s52, v{TMPA+1}", "s_nop 4", "s_cbranch_vccnz L_slow", "L_slowret:"]
    return p

def slow_path():
    p = ["L_slow:"]; A = p.append
    SK, SV = 60, 64
    A("s_lshl_b32 s52, s7, 21")
    A("s_add_u32 s60, s72, s52"); A("s_addc_u32 s61, s73, 0"); A("s_mov_b32 s62, 131072"); A("s_mov_b32 s63, 0x20000")
    A("s_add_u32 s64, s74, s52"); A("s_addc_u32 s65, s75, 0"); A("s_mov_b32 s66, 131072"); A("s_mov_b32 s67, 0x20000")
    ka, va = TMPA, TMPA + 1
    A(f"v_and_b32 v{ka}, 15, v1"); A(f"v_lshrrev_b32 v{va}, 4, v1")
    A(f"v_lshlrev_b32 v{TMPA+2}, 1, v{ka}")
    A(f"v_lshlrev_b32 v{ka}, 8, v{ka}"); A(f"v_lshl_add_u32 v{ka}, v{va}, 4, v{ka}")
    A(f"v_lshl_add_u32 v{va}, v{va}, 10, v{TMPA+2}")
    for g in range(6): A(f"v_mov_b32 v{V_NEGM+4*g}, 0xff800000")
    def kloads():
        q = []
        for kt in range(2):
            q.append(f"s_add_u32 s53, s52, {4096*kt}")
            for ks in range(4): q.append(f"buffer_load_dwordx4 {v(KF+4*(4*kt+ks),4)}, v{ka}, {srd(SK)}, s53 offen offset:{64*ks}")
        return q
    def schain(g, c0):
        q = []
        for kt in range(2):
            d = v(SB[0]+4*kt, 4)
            for ks in range(4): q.append(M(d, v(KF+4*(4*kt+ks),4), QF(g, ks), c0 if ks == 0 else d))
        return q + ["s_nop 7", "s_nop 3"]
    A("s_mov_b32 s52, 0")
    A("L_slow1:")
    p += kloads(); A("s_waitcnt vmcnt(0)")
    for g in range(6):
        p += schain(g, "0")
        n = V_NEGM + 4*g; s0 = SB[0]
        for k in range(4): A(f"v_max3_f32 v{n}, v{n}, v{s0+2*k}, v{s0+2*k+1}")
    A("s_add_u32 s52, s52, 8192"); A("s_cmp_lg_u32 s52, 131072"); A("s_cbranch_scc1 L_slow1")
    for g in range(6): p += rowmax_bcast(V_NEGM + 4*g)
    for r in range(192): A(f"v_accvgpr_write_b32 a{r}, 0")
    for g in range(6):
        for k in range(4): A(f"v_mov_b32 v{LREG(g)+k}, 0")
    A("s_mov_b32 s52, 0")
    A("L_slow2:")
    p += kloads()
    for t in range(2):
        A(f"s_add_u32 s53, s52, {4096*t}")
        for i in range(8):
            for j in range(4):
                A(f"buffer_load_ushort v{VF[j&1]+4*i+2*t+(j>>1)}, v{va}, {srd(SV)}, s53 offen offset:{256*j+32*i}")
        A("s_waitcnt vmcnt(0)")
    for r in range(32): A(f"v_lshl_or_b32 v{VF[0]+r}, v{VF[1]+r}, 16, v{VF[0]+r}")
    for g in range(6):
        p += schain(g, v(V_NEGM+4*g, 4))
        for k in range(8): A(f"v_exp_f32 v{SB[0]+k}, v{SB[0]+k}")
        A("s_nop 0")
        for k in range(4): A(f"v_cvt_pk_bf16_f32 v{PB[0]+k}, v{SB[0]+2*k}, v{SB[0]+2*k+1}")
        A("s_nop 1")
        for i in range(8):
            d = a(OACC(i, g), 4); A(M(d, v(VF[0]+4*i,4), v(PB[0],4), d))
        d = v(LREG(g), 4); A(M(d, v(V_ONES,4), v(PB[0],4), d))
        A("s_nop 3")
    A("s_add_u32 s52, s52, 8192"); A("s_cmp_lg_u32 s52, 131072"); A("s_cbranch_scc1 L_slow2")
    A("s_nop 7"); A("s_nop 3")
    A("s_branch L_slowret")
    return p

def gen0_end():
    p = []; A = p.append
    for g in range(6): A(f"v_rcp_f32 v{V_RC0+g}, v{LREG(g)}")
    A("v_lshlrev_b32 v57, 4, v1")
    A("s_add_u32 s16, s16, 0x200000"); A("s_addc_u32 s17, s17, 0")
    A("s_mov_b32 s7, 1")
    p += q_addr_setup()
    p += pf_ahead(3, 8)
    p += stamp()
    return p

OPK = 64
OPB = [184, 208, 232]
V_AO = [8, 9]; V_BO = [10, 11]; HELD = [12, 16, 20, 24, 28, 32, 40, 44, 48, 52, 56]; ND = 13; V_OSV = 60; V_RC1 = 2
def opacc(nt, g): return v(OPK + 4*(nt*6+g), 4) if nt < 5 else a(4*((nt-5)*6+g), 4)
def opA(s, nt): return 120 + 4 * ((10*(s % 3) + nt + 18) % 30)
def ldA(s, nt):
    half, x = divmod(nt, 5)
    return I(f"buffer_load_dwordx4 {a(opA(s,nt),4)}, {v(V_AO[half])}, {srd(SWP)}, s{53 if x < 4 else 54} offen offset:{1024*(x&3)} sc1", tag=('opa', 0, ('OP', s)))
def ldB(s, g):
    return I(f"buffer_load_dwordx4 {v(OPB[s%3]+4*g,4)}, {v(V_BO[g//3])}, {srd(SO)}, s{S_OPB} offen offset:{1024*(g%3)} sc1", tag=('opb', 0, ('OP', s)))

def poll(word_sreg_code, sh, val, tag, va, vd):
    return word_sreg_code + [f"v_mov_b32 v{va}, s52", "s_mov_b32 s55, 0x40000",
            f"L_poll{tag}:",
            f"buffer_load_dword v{vd}, v{va}, {srd(SDBG)}, 0 offen sc1",
            "s_waitcnt vmcnt(0)",
            f"v_readfirstlane_b32 s52, v{vd}", "s_nop 3",
            f"s_lshr_b32 s52, s52, {sh}", "s_and_b32 s52, s52, 0xff",
            f"s_cmp_ge_u32 s52, {val}", f"s_cbranch_scc1 L_pollend{tag}",
            "s_sleep 8", "s_sub_u32 s55, s55, 1", "s_cmp_lg_u32 s55, 0", f"s_cbranch_scc1 L_poll{tag}",
            f"L_pollend{tag}:"]
CLW = [f"s_lshl_b32 s52, s{S_C}, 2"]
BRW = [f"s_lshr_b32 s52, s{S_C}, 4", "s_lshl_b32 s52, s52, 2", "s_add_u32 s52, s52, 128"]
def signal(word, val, va, vd):
    return word + [f"v_mov_b32 v{vd}, {val:#x}", f"v_mov_b32 v{va}, s52", "s_mov_b64 exec, 1",
            f"buffer_atomic_add v{vd}, v{va}, {srd(SDBG)}, 0 offen sc1", "s_mov_b64 exec, -1"]

OUNITS = [(g, sp) for g in (3, 4, 5, 0, 1, 2) for sp in range(4)]
def gen1_end():
    p = ["L_gen1end:"]; A = p.append
    for g in range(6): A(f"v_rcp_f32 v{V_RC1+g}, v{LREG(g)}")
    A("s_cmp_eq_u32 s4, 0"); A("s_cbranch_scc1 L_polla0"); A("L_pollret0:")
    A("s_barrier")
    A(f"s_add_u32 s{S_OS}, s{S_OS}, {16*24576}")
    A("s_lshr_b32 s52, s37, 1"); A("s_mul_i32 s52, s52, 1310720")
    A("s_add_u32 s24, s24, s52"); A("s_addc_u32 s25, s25, 0"); A("s_mov_b32 s26, 1310720")
    if OPT['nowo']: A("s_mov_b32 s26, 0")
    A(f"v_lshlrev_b32 v{V_OSV}, 4, v1")
    A("s_mul_i32 s52, s6, 5120"); A(f"v_add_u32 v{V_AO[0]}, s52, v{V_OSV}")
    A("s_sub_u32 s52, 5120, s52"); A(f"v_add_u32 v{V_AO[1]}, s52, v{V_OSV}")
    A("s_mul_i32 s52, s5, 3072"); A(f"v_add_u32 v{V_BO[0]}, s52, v{V_OSV}")
    A("s_sub_u32 s52, 3072, s52"); A(f"v_add_u32 v{V_BO[1]}, s52, v{V_OSV}")
    A(f"s_mul_i32 s{S_OPA}, s4, 163840")
    A("s_and_b32 s52, s37, 1"); A("s_lshl_b32 s52, s52, 5"); A(f"s_lshl_b32 s{S_OPB}, s4, 2")
    A(f"s_add_u32 s{S_OPB}, s{S_OPB}, s52"); A(f"s_mul_i32 s{S_OPB}, s{S_OPB}, 24576")
    if OPT['noo']: A(f"s_add_u32 s{S_OPB}, s{S_OPB}, 0x8000000")
    def aset(): return [f"s_mov_b32 s53, s{S_OPA}", f"s_add_u32 s54, s{S_OPA}, 4096"]
    p += aset()
    loads = [ldA(0, nt) for nt in range(10)] + [ldB(0, g) for g in range(6)]
    p += loads
    later = [[f"s_add_u32 s{S_OPA}, s{S_OPA}, 10240"] + aset() + [ldA(1, 0)], [ldA(1, 1)],
             [f"s_add_u32 s{S_OPB}, s{S_OPB}, 6144", ldB(1, 0)]] + [[ldB(1, g)] for g in range(1, 6)]
    after345 = [[ldA(1, nt)] for nt in range(2, 10)] + [[f"s_add_u32 s{S_OPA}, s{S_OPA}, 10240"] + aset() + [ldA(2, 0)]] + [[ldA(2, nt)] for nt in range(1, 9)]
    for n, (g, sp) in enumerate(OUNITS):
        if n < ND:
            pk = 80 + 4 * (n % 4)
            p += o_unit(g, sp, V_RC1+g, 64 + 8*(n & 1), pk, V_OSV, 1, pkmul=True) + o_store(g, sp, pk, V_OSV, 1, 51)
        else:
            p += o_unit(g, sp, V_RC1+g, 64 + 8*(n & 1), HELD[n-ND], V_OSV, 1, pkmul=True)
        if n < 12:
            if later: p += later.pop(0)
        else:
            for _ in range(2):
                if after345: p += after345.pop(0)
    assert not later and not after345
    A(f"s_mov_b32 s{S_CNT}, 0")
    A(W('vm', need_tag(lambda t: t[2] == ('OP', 0))))
    p += stamp()
    return p

def op_step(s):
    w = Weave(); put = w.put
    for nt in range(10):
        for g in range(6):
            d = opacc(nt, g)
            w.mf.append(M(d, a(opA(s, nt),4), v(OPB[s%3]+4*g,4), "0" if s == 0 else d))
    put(0, ldA(s+2, 9))
    put(1, f"s_cmp_eq_u32 s{S_CNT}, 13", f"s_cselect_b32 s55, s76, 10240")
    put(3, f"s_cmp_eq_u32 s{S_CNT}, 29", "s_cselect_b32 s55, s77, s55")
    put(5, f"s_add_u32 s{S_OPA}, s{S_OPA}, s55", f"s_mov_b32 s53, s{S_OPA}")
    for nt in range(9): put(6*(nt+1), ldA(s+3, nt))
    put(7, f"s_add_u32 s54, s{S_OPA}, 4096")
    put(8, f"s_cmp_eq_u32 s{S_CNT}, 14", f"s_cselect_b32 s55, s78, 6144")
    put(10, f"s_cmp_eq_u32 s{S_CNT}, 30", "s_cselect_b32 s55, s77, s55")
    put(14, f"s_add_u32 s{S_OPB}, s{S_OPB}, s55")
    for g in range(6): put(15 + 6*g, ldB(s+2, g))
    put(57, f"s_add_u32 s{S_CNT}, s{S_CNT}, 1")
    put(59, W('vm', need_tag(lambda t: t[2] == ('OP', s+1))))
    return w

def op_first():
    w = Weave()
    for s in range(5): w.extend(op_step(s))
    items = []
    for n in range(ND, 24):
        items += o_store(*OUNITS[n], HELD[n-ND], V_OSV, 1, 51)
    w.place(items, 2, None, mingap=19)
    pre = [f"s_mov_b32 s76, {(64-16+1)*10240}", "s_mov_b32 s77, 0x10000000", f"s_mov_b32 s78, {(12*4+1)*6144}"]
    return pre + w.out()

def op_final():
    p = []; A = p.append
    p += stamp()
    A("v_lshlrev_b32 v8, 4, v1")
    A("s_mul_i32 s52, s4, 30720")
    A("v_add_u32 v9, s52, v8")
    A("s_xor_b32 s53, s4, 1"); A("s_mul_i32 s53, s53, 30720")
    A("v_add_u32 v10, s53, v8")
    A("s_waitcnt vmcnt(0)")
    A("s_nop 4")
    for k in range(30): A(I(f"ds_write_b128 v9, {a(4*k,4)} offset:{1024*k}", tag=('lds', 'RED', 1)))
    A("s_waitcnt lgkmcnt(0)"); A("s_barrier")
    p += stamp(True)
    T = 184
    def addback(tiles, addr, ver):
        q = []
        n = len(tiles); D = 12
        for k in range(min(D, n)): q.append(I(f"ds_read_b128 {v(T+4*k,4)}, v{addr} offset:{1024*k}", src=('RED', ver)))
        for k in range(n):
            q.append(W('lgkm', need_regs(v(T+4*(k%D),4))))
            for e in range(2): q.append(f"v_pk_add_f32 {v(tiles[k]+2*e,2)}, {v(tiles[k]+2*e,2)}, {v(T+4*(k%D)+2*e,2)}")
            if k + D < n: q.append(I(f"ds_read_b128 {v(T+4*(k%D),4)}, v{addr} offset:{1024*(k+D)}", src=('RED', ver)))
        return q
    give = [OPK+4*(nt*6+g) for nt in range(5) for g in range(3, 6)]
    keep = [OPK+4*(nt*6+g) for nt in range(5) for g in range(3)]
    p += addback([OPK+4*k for k in range(30)], 10, 1)
    p += stamp(True)
    A("s_barrier")
    A("s_xor_b32 s53, s4, 2"); A("s_mul_i32 s53, s53, 30720")
    A("v_add_u32 v10, s53, v8")
    for k, r in enumerate(give): A(I(f"ds_write_b128 v9, {v(r,4)} offset:{1024*k}", tag=('lds', 'RED', 2)))
    A("v_and_b32 v11, 15, v1")
    A("v_mul_u32_u24 v11, 2560, v11")
    A("v_lshrrev_b32 v12, 4, v1")
    A("v_lshl_add_u32 v11, v12, 3, v11")
    A(f"s_mul_i32 s52, s5, {48*2560}")
    A("s_mul_i32 s53, s6, 160")
    A("s_add_u32 s52, s52, s53")
    A("v_add_u32 v11, s52, v11")
    A("s_waitcnt lgkmcnt(0)"); A("s_barrier")
    p += stamp(True)
    p += addback(keep, 10, 2)
    p += stamp(True)
    for y in range(3):
        A(f"s_mov_b32 s53, {y*16*2560}")
        for x in range(5):
            r = OPK + 4*(x*6+y); d = T + 2*(y*5+x)
            A(f"v_cvt_pk_bf16_f32 v{d}, v{r}, v{r+1}")
            A(f"v_cvt_pk_bf16_f32 v{d+1}, v{r+2}, v{r+3}")
            A(f"buffer_store_dwordx2 {v(d,2)}, v11, {srd(SOUT)}, s53 offen offset:{32*x}")
    p += stamp()
    return p

def stamp_dump():
    if not OPT['stamps']: return []
    return ["s_load_dwordx2 s[56:57], s[0:1], 96", "s_memrealtime s[52:53]", "s_waitcnt lgkmcnt(0)",
         "s_sub_u32 s52, s52, s68", "s_mov_b32 m0, 63", "s_nop 0", "v_writelane_b32 v39, s52, m0",
         "s_add_u32 s56, s56, 0x4000000", "s_addc_u32 s57, s57, 0", "s_mov_b32 s58, 0x100000", "s_mov_b32 s59, 0x20000",
         "s_lshl_b32 s52, s2, 10", "s_lshl_b32 s53, s4, 8", "s_add_u32 s52, s52, s53", "v_lshlrev_b32 v8, 2, v1", "s_nop 4",
         "buffer_store_dword v39, v8, s[56:59], s52 offen"]

def build():
    P = Prog()
    for nm in ("prologue", "qfirst0", "qloop", "qtail", "trans", "a0", "aloop", "atail", "gen0end", "qfirst1", "gen1end", "opfirst", "ophdr", "opbody", "opfinal"):
        P.place(nm)
    P.run("prologue", prologue())
    for gen in range(2):
        if gen == 0: P.run("qfirst0", q_pre(0) + q_first(0) + stamp(True))
        else: P.run("qfirst1", q_pre(1) + q_first(1) + stamp(True) + ["s_branch L_qloop"])
        for ps in range(1 if gen == 0 else 3, 4):
            w = Weave()
            for k in range(4): w.extend(q_step(gen, 4*ps+k))
            P.run("qloop", ["L_qloop:"] + w.out() + stamp(True) + [f"s_sub_u32 s{S_CNT}, s{S_CNT}, 1", f"s_cmp_lg_u32 s{S_CNT}, 0", "s_cbranch_scc1 L_qloop"])
        w = Weave()
        for s in range(16, 20): w.extend(q_step(gen, s))
        P.run("qtail", w.out())
        P.run("trans", transition(gen))
        P.run("a0", a_tile(gen, 0))
        for ps in range(3):
            body = ["L_aloop:"]
            for k in range(4): body += a_tile(gen, 1+4*ps+k)
            body += stamp(True) + [f"s_sub_u32 s{S_CNT}, s{S_CNT}, 1", f"s_cmp_lg_u32 s{S_CNT}, 0", "s_cbranch_scc1 L_aloop"]
            P.run("aloop", body)
        P.run("atail", a_tile(gen, 13) + a_tile(gen, 14) + a_tile(gen, 15) + a_drain(gen) + stamp() + ["s_cmp_eq_u32 s7, 1", "s_cbranch_scc1 L_gen1end"])
        if gen == 0: P.run("gen0end", gen0_end())
    P.run("gen1end", gen1_end())
    P.run("opfirst", op_first() + stamp(True))
    for ps in range(9):
        P.run("ophdr", ["L_oploop:", f"s_cmp_eq_u32 s{S_CNT}, 8", "s_cbranch_scc1 L_oppub", f"s_cmp_eq_u32 s{S_CNT}, 14", "s_cbranch_scc1 L_oppoll", "L_opbody:"])
        if ps == 1: P.run("oppub_", [W('vm', need_tag(lambda t: t[0] == 'ost')), "s_barrier"])
        w = Weave()
        for k in range(3): w.extend(op_step(5+3*ps+k))
        P.run("opbody", w.out() + stamp(True) + [f"s_cmp_lg_u32 s{S_CNT}, 32", "s_cbranch_scc1 L_oploop"])
    P.run("opfinal", op_final() + stamp_dump() + ["L_end:", "s_endpgm"])
    return P

def finish(P):
    res = resolve_waits([P.trace])
    npub = res[("oppub_", 0)]
    P.order.remove("oppub_")
    P.add_static("oppub", ["L_oppub:", f"s_waitcnt vmcnt({npub})", "s_barrier", "s_cmp_eq_u32 s4, 0", "s_cbranch_scc0 L_opbody"]
                 + signal(CLW, 0x100, 62, 63) + ["s_branch L_opbody"])
    P.add_static("oppoll", ["L_oppoll:", "s_cmp_eq_u32 s4, 0", "s_cbranch_scc0 L_pollendb"] + poll(CLW, 8, 8, "b", 62, 63) + ["s_barrier", "s_branch L_opbody"])
    P.add_static("sig0", ["L_sig0:", "s_cmp_eq_u32 s7, 0", "s_cbranch_scc1 L_sig0p"] + signal(CLW, 1, 62, 63) + ["s_branch L_nosig0",
                 "L_sig0p:"] + signal(BRW, 1, 62, 63) + ["s_branch L_nosig0"])
    P.add_static("polla", ["L_polla0:"] + poll(CLW, 0, 8, "a", 62, 63) + poll(BRW, 0, 128, "c", 62, 63) + ["s_branch L_pollret0"])
    P.add_static("slow", slow_path())
    errs = check(P.trace, res, private=lambda r: r == 'PK')
    errs += check([("slow", P.static["slow"])], res)
    return res, errs

HEADER = open('concat_heads__mha_block_cached__mha_block_cached__near_ridge.s.ref').read().split("; Override launch")[0]

def text(P, res):
    body = emit(P, res)
    return (HEADER + "; @launch grid=(256,1,1) block=(256,1,1) lds=163840\n"
            '.amdgcn_target "amdgcn-amd-amdhsa--gfx950"\n.text\n'
            f".globl {NAME}\n.p2align 8\n.type {NAME},@function\n{NAME}:\n" + body + "\n"
            '.section .rodata,"a"\n.p2align 6\n'
            f".amdhsa_kernel {NAME}\n  .amdhsa_next_free_vgpr 512\n  .amdhsa_next_free_sgpr 102\n  .amdhsa_accum_offset 256\n"
            "  .amdhsa_group_segment_fixed_size 0\n  .amdhsa_float_denorm_mode_32 3\n  .amdhsa_kernarg_size 104\n  .amdhsa_user_sgpr_count 2\n"
            "  .amdhsa_user_sgpr_kernarg_segment_ptr 1\n  .amdhsa_system_sgpr_workgroup_id_x 1\n.end_amdhsa_kernel\n")

if __name__ == "__main__":
    out = sys.argv[1] if len(sys.argv) > 1 else "k.s"
    for o in sys.argv[2:]:
        k, val = o.split('=', 1); OPT[k] = eval(val)
    P = build()
    res, errs = finish(P)
    import re as _re
    seen = set()
    for e in errs:
        key = _re.sub(r"\('[a-z0-9]+', \d+\)", "", e)
        if key not in seen:
            seen.add(key)
            if len(seen) <= 40: print("ERR", e)
    print(len(errs), "checker errors")
    open(out, "w").write(text(P, res))
```

```python
import re

REG_RE = re.compile(r'^(-|abs\()?([vas])(\d+)\)?$')
RNG_RE = re.compile(r'^(-)?([vas])\[(\d+):(\d+)\]$')

def regs_of(tok):
    tok = tok.strip()
    m = REG_RE.match(tok)
    if m: return [(m.group(2), int(m.group(3)))]
    m = RNG_RE.match(tok)
    if m: return [(m.group(2), i) for i in range(int(m.group(3)), int(m.group(4)) + 1)]
    if tok in ('m0', 'vcc', 'exec', 'scc'): return [(tok, 0)]
    if tok in ('vcc_lo', 'vcc_hi'): return [('vcc', 0)]
    return []

TRANS = ('v_exp_f32', 'v_rcp_f32', 'v_log_f32', 'v_rsq_f32', 'v_sqrt_f32')

class I:
    __slots__ = ('text', 'kind', 'rd', 'wr', 'tag', 'src', 'need', 'mn', 'states', 'srcC', 'AB', 'label')
    def __init__(self, text, tag=None, src=None):
        self.text = text; self.tag = tag; self.src = src; self.need = None; self.label = None
        self.states = 1; self.srcC = []; self.AB = []
        t = text.split(';')[0].strip()
        if t.endswith(':') or t.startswith('.') or t == '':
            self.kind = 'pseudo'; self.rd = []; self.wr = []; self.mn = ''; self.states = 0; return
        parts = t.split(None, 1)
        mn = parts[0]; self.mn = mn
        ops = []
        if len(parts) > 1:
            ops = [o.strip() for o in parts[1].split(',')]
            last = ops[-1].split()
            mods = last[1:] if last else []
            if last: ops[-1] = last[0]
        else:
            mods = []
        R = lambda k: regs_of(ops[k]) if k < len(ops) else []
        allr = lambda a: [x for k in range(a, len(ops)) for x in R(k)]
        rd = []; wr = []
        if mn.startswith('v_mfma'):
            self.kind = 'mfma'; wr = R(0); self.AB = R(1) + R(2); self.srcC = R(3); rd = self.AB + self.srcC
        elif mn.startswith('ds_read'):
            self.kind = 'ds'; wr = R(0); rd = R(1)
        elif mn.startswith('ds_write'):
            self.kind = 'dsw'; rd = allr(0)
        elif mn.startswith('buffer_load') or mn.startswith('global_load'):
            if 'lds' in mods:
                self.kind = 'dma'; rd = allr(0) + [('m0', 0)]
            else:
                self.kind = 'vld'; wr = R(0); rd = allr(1)
                if 'd16' in mn: rd += R(0)
        elif mn.startswith('buffer_store') or mn.startswith('global_store') or mn.startswith('buffer_atomic') or mn.startswith('global_atomic'):
            self.kind = 'vst'; rd = allr(0)
        elif mn.startswith('s_load'):
            self.kind = 'smem'; wr = R(0); rd = allr(1)
        elif mn in ('s_memtime', 's_memrealtime'):
            self.kind = 'smem'; wr = R(0)
        elif mn == 's_waitcnt':
            self.kind = 'wait'
        elif mn == 's_barrier':
            self.kind = 'barrier'
        elif mn == 's_nop':
            self.kind = 'nop'; self.states = int(ops[0], 0) + 1
        elif mn in ('s_branch', 's_endpgm', 's_sleep', 's_setprio') or mn.startswith('s_cbranch'):
            self.kind = 'ctl'
            if 'vcc' in mn: rd = [('vcc', 0)]
            if 'scc' in mn: rd = [('scc', 0)]
        elif mn.startswith('s_cmp'):
            self.kind = 'salu'; rd = allr(0); wr = [('scc', 0)]
        elif mn.startswith('s_'):
            self.kind = 'salu'; wr = R(0); rd = allr(1)
            if mn.startswith(('s_add', 's_sub', 's_and', 's_or', 's_xor', 's_lshl', 's_lshr')): wr = wr + [('scc', 0)]
            if mn.startswith(('s_cselect', 's_addc', 's_subb')): rd = rd + [('scc', 0)]
            if 'saveexec' in mn: wr = wr + [('exec', 0)]
        elif mn.startswith('v_'):
            self.kind = 'trans' if mn in TRANS else 'valu'
            wr = R(0); rd = allr(1)
            if mn.startswith('v_permlane') or mn.startswith('v_swap'):
                wr = R(0) + R(1); rd = R(0) + R(1)
            if mn.startswith(('v_fmac', 'v_writelane')): rd = rd + R(0)
            if mn.startswith('v_cndmask') and len(ops) == 3: rd = rd + [('vcc', 0)]
        else:
            raise ValueError('unknown instr ' + text)
        self.rd = rd; self.wr = wr

def W(cnt, need):
    i = I('s_waitcnt placeholder'); i.kind = 'wait'; i.need = (cnt, need); return i

def need_regs(*rs):
    s = set()
    for r in rs: s.update(regs_of(r))
    return lambda op: any(x in s for x in op.wr)
def need_tag(f):
    return lambda op: op.tag is not None and f(op.tag)
need_all = lambda op: True

class Prog:
    def __init__(self):
        self.order = []; self.static = {}; self.trace = []
    def place(self, name):
        if name not in self.order: self.order.append(name)
    def run(self, name, instrs):
        instrs = [x if isinstance(x, I) else I(x) for x in instrs]
        if name in self.static:
            st = self.static[name]
            assert len(st) == len(instrs), (name, len(st), len(instrs))
            for a, b in zip(st, instrs):
                assert a.text == b.text, (name, a.text, b.text)
        else:
            self.static[name] = instrs
            self.place(name)
        self.trace.append((name, instrs))
    def add_static(self, name, instrs):
        instrs = [x if isinstance(x, I) else I(x) for x in instrs]
        self.static[name] = instrs; self.place(name)

VM = ('dma', 'vld', 'vst'); LG = ('ds', 'dsw')

def parse_wait(text):
    vm = re.search(r'vmcnt\((\d+)\)', text); lg = re.search(r'lgkmcnt\((\d+)\)', text)
    return (int(vm.group(1)) if vm else None, int(lg.group(1)) if lg else None)

def resolve_waits(traces):
    res = {}
    for _pass in range(3):
        changed = False
        for trace in traces:
            q = {'vm': [], 'lgkm': []}
            for name, ins in trace:
                for k, op in enumerate(ins):
                    if op.kind in VM: q['vm'].append(op)
                    elif op.kind in LG: q['lgkm'].append(op)
                    elif op.kind == 'smem': q['lgkm'].append(op)
                    elif op.kind == 'wait':
                        if op.need is not None:
                            c, pred = op.need
                            last = -1
                            for j, o in enumerate(q[c]):
                                if pred(o): last = j
                            n = len(q[c]) - 1 - last
                            mx = 63 if c == 'vm' else 15
                            n = 999 if last < 0 else min(n, mx)
                            key = (name, k)
                            if key not in res or n < res[key]:
                                res[key] = n; changed = True
                            n = res[key]
                            if len(q[c]) > n: q[c] = q[c][len(q[c]) - n:] if n else []
                        else:
                            vm, lg = parse_wait(op.text)
                            if vm is not None and len(q['vm']) > vm: q['vm'] = q['vm'][len(q['vm']) - vm:] if vm else []
                            if lg is not None and len(q['lgkm']) > lg: q['lgkm'] = q['lgkm'][len(q['lgkm']) - lg:] if lg else []
        if not changed: break
    return res

def wait_text(op, n):
    c = op.need[0]
    return f"s_waitcnt vmcnt({n})" if c == 'vm' else f"s_waitcnt lgkmcnt({n})"

def check(trace, res, private=lambda region: False, verbose=True):
    errs = []
    q = {'vm': [], 'lgkm': []}
    pend = {}
    t = 0; n = 0; last_mfma = -100
    lastw = {}
    lastC = {}
    laststore = {}
    nbar = 0
    dma_done = {}
    rd_state = {}
    cur_ver = {}
    def retire(c, keep):
        while len(q[c]) > keep:
            o = q[c].pop(0)
            for r in o.wr:
                if pend.get(r) is o: del pend[r]
            if o.kind == 'dma' and o.tag and o.tag[0] == 'lds':
                d = dma_done[o.tag[1:3]]; d[1] += 1; d[2] = nbar
            if o.kind == 'dsw' and o.tag and o.tag[0] == 'lds':
                d = dma_done[o.tag[1:3]]; d[1] += 1; d[2] = nbar
            if o.kind == 'ds' and o.src:
                d = rd_state[o.src]; d[0] -= 1; d[1] = nbar
    for name, ins in trace:
        for k, op in enumerate(ins):
            if op.kind == 'pseudo': continue
            where = f"{name}[{k}] {op.text}"
            if op.kind == 'mfma':
                t = max(t, last_mfma + 16)
            for r in op.rd + op.wr:
                if r in pend and not (op.kind in ('vld',) and 'd16' in op.mn):
                    errs.append(f"use of pending load reg {r}: {where} (load: {pend[r].text})")
            isv = op.kind in ('valu', 'trans')
            if ('scc', 0) in op.rd and ('scc', 0) in lastw:
                wmn = lastw[('scc', 0)][3].mn
                ok = wmn.startswith('s_cmp') if not op.mn.startswith(('s_addc', 's_subb')) else wmn in ('s_add_u32', 's_sub_u32')
                if op.mn.startswith('s_addc') and lastw[('scc', 0)][1] != n - 1: ok = False
                if not ok: errs.append(f"SCC from {lastw[('scc',0)][3].text}: {where}")
            for r in set(op.rd):
                if r in lastw:
                    wk, wn, wt, wop = lastw[r]
                    gap = n - wn - 1
                    if wk == 'mfma':
                        if op.kind == 'mfma':
                            if r in op.AB and t - wt < 40: errs.append(f"mfma D->AB {r}: {where}")
                            if r in op.srcC and op.srcC != wop.wr and t - wt < 32: errs.append(f"mfma D->C overlap {r}: {where}")
                        elif t - wt < 40: errs.append(f"mfma D->read {r} dt={t-wt}: {where}")
                    elif wk in ('valu', 'trans'):
                        if op.kind == 'mfma' and gap < 2: errs.append(f"valu->mfma {r}: {where}")
                        if wk == 'trans' and op.kind == 'valu' and gap < 1: errs.append(f"trans->valu {r}: {where}")
                        if op.mn.startswith('v_permlane') and gap < 2: errs.append(f"valu->permlane {r}: {where}")
                        if op.mn.startswith(('v_readfirstlane', 'v_readlane')) and r[0] == 'v' and gap < 1: errs.append(f"valu->readlane {r}: {where}")
                        if r[0] in ('s', 'vcc'):
                            if op.kind in VM and gap < 5: errs.append(f"valu sgpr->vmem {r}: {where}")
                            if isv and gap < 2: errs.append(f"valu sgpr->valu {r}: {where}")
                            if op.kind in ('salu', 'ctl') and gap < 2: errs.append(f"valu sgpr->salu {r}: {where}")
                    elif wk == 'salu':
                        if r == ('m0', 0) and op.kind == 'dma' and gap < 1: errs.append(f"m0->dma: {where}")
            for r in set(op.wr):
                if r in lastw and lastw[r][0] == 'mfma' and op.kind != 'mfma' and t - lastw[r][2] < 40:
                    errs.append(f"mfma D->write (WAW) {r}: {where}")
                if isv and r in lastC and t - lastC[r] < 20: errs.append(f"mfma C read->valu write {r}: {where}")
                if r in laststore and n - laststore[r] - 1 < 2: errs.append(f"store data WAR {r}: {where}")
            if op.kind in ('dma', 'dsw') and op.tag and op.tag[0] == 'lds':
                key = op.tag[1:3]; region = key[0]
                dma_done.setdefault(key, [0, 0, -1])[0] += 1
                for (rg, ver), st in rd_state.items():
                    if rg == region and ver != key[1]:
                        if st[0] > 0: errs.append(f"LDS WAR: write {key} while reads of {(rg,ver)} outstanding: {where}")
                        elif not private(region) and st[1] >= nbar: errs.append(f"LDS WAR: write {key} w/o barrier after reads of {(rg,ver)}: {where}")
                for (rg, ver), d in dma_done.items():
                    if rg == region and ver != key[1]:
                        if d[0] != d[1] and not private(region): errs.append(f"LDS WAW: write {key} while writes of {(rg,ver)} outstanding: {where}")
                        elif not private(region) and d[2] >= nbar: errs.append(f"LDS WAW: write {key} w/o barrier after writes {(rg,ver)}: {where}")
                cur_ver[region] = key[1]
            if op.kind == 'ds' and op.src:
                key = op.src
                d = dma_done.get(key)
                if d is None: errs.append(f"LDS read of never-written {key}: {where}")
                else:
                    if d[0] != d[1]: errs.append(f"LDS RAW: read {key} with {d[0]-d[1]} writes outstanding: {where}")
                    elif not private(key[0]) and d[2] >= nbar: errs.append(f"LDS RAW: read {key} w/o barrier: {where}")
                    if cur_ver.get(key[0]) != key[1]: errs.append(f"LDS read {key} but region holds {cur_ver.get(key[0])}: {where}")
                st = rd_state.setdefault(key, [0, -1]); st[0] += 1
            if op.kind in VM:
                q['vm'].append(op)
                if len(q['vm']) > 63: retire('vm', 63)
            if op.kind in LG or op.kind == 'smem': q['lgkm'].append(op)
            if op.kind in ('vld', 'ds', 'smem'):
                for r in op.wr: pend[r] = op
            if op.kind == 'wait':
                if op.need is not None:
                    retire(op.need[0], res[(name, k)])
                else:
                    vm, lg = parse_wait(op.text)
                    if vm is not None: retire('vm', vm)
                    if lg is not None: retire('lgkm', lg)
            if op.kind == 'barrier': nbar += 1
            for r in op.wr: lastw[r] = (op.kind, n, t, op)
            if op.kind == 'mfma':
                for r in op.srcC: lastC[r] = t
                last_mfma = t
            if op.kind == 'vst' and ('x4' in op.mn or 'x3' in op.mn):
                for r in regs_of(op.text.split(None, 1)[1].split(',')[0]): laststore[r] = n
            n += op.states; t += 4 * op.states
    return errs

def emit(prog, res):
    out = []
    for name in prog.order:
        out.append(f"; ---- block {name}")
        for k, op in enumerate(prog.static[name]):
            if op.kind == 'wait' and op.need is not None:
                out.append("    " + wait_text(op, res[(name, k)]))
            elif op.kind == 'pseudo':
                if op.text: out.append(op.text)
            else:
                out.append("    " + op.text)
    return "\n".join(out)

def weave(mfmas, fill):
    out = []
    for g, m in enumerate(mfmas):
        out.append(m)
        out.extend(fill.get(g, []))
    assert all(0 <= g < len(mfmas) for g in fill), sorted(fill)
    return out
```

```python
import sys, math, struct
from dsl import *

NAME = "concat_heads__mha_block_cached__mha_block_cached__near_ridge_kernel"
OPT = dict(stamps=False, fine=False, noq=False, nowo=False, noo=False, nokv=False, pf=True, codepf=True, pf1=False, pf0=9, q0f='', q0tf='', t0step=4, kvt=False, kvtf=' nt', nopack=False, q1steps=16, ostf=' sc1', nost0=False, noekv=False, q1span=11.5, thr=0x4e800000)

def v(b, n=1): return f"v{b}" if n == 1 else f"v[{b}:{b+n-1}]"
def a(b, n=1): return f"a{b}" if n == 1 else f"a[{b}:{b+n-1}]"
def M(d, A, B, C): return I(f"v_mfma_f32_16x16x32_bf16 {d}, {A}, {B}, {C}")

V_XO = [2, 3, 4]; V_WQO = [5, 6, 7, 38]
V_KV = [8, 9]
V_KA = [10, 14]; V_VA = [18, 26]
V_ONES = 34
V_NEGM = 40
V_QXA = 40; V_QWA = 41
V_PFW = 45; V_PFX = 46
ACC = 64
KF = 64; VF = [96, 128]; SB = [160, 168]; PB = [176, 180]
TMPA = 184; TMPB = 248
def LREG(g): return 208 + 4 * g if g < 4 else 240 + 4 * (g - 4)
def QF(g, ks):
    if g < 4: return a(192 + 16 * g + 4 * ks, 4)
    return v((192 if g == 4 else 224) + 4 * ks, 4)
def OACC(i, g): return (g * 8 + i) * 4
XB = [192, 216]; WA = 240

SX, SWQ, SKV, SO, SWP, SOUT, SDBG = 8, 12, 16, 20, 24, 28, 32
S_C, S_J = 36, 37
S_XS, S_WS, S_KS = 38, 39, 40
S_MX, S_MW, S_MK = 41, 42, 43
S_CNT, S_ME = 44, 45
S_OS = 48
S_OPA, S_OPB = 49, 50
SWO = 60
S_KP, S_VP = 72, 74
def srd(b): return f"s[{b}:{b+3}]"
SLOT = [0, 32768, 65536, 98304]; XSLOT = 131072
WPOFF = 0x3000000
NT = " nt"

def stamp(fine=False):
    if not OPT['stamps'] or (fine and not OPT['fine']): return []
    return [("s_memrealtime" if OPT.get('rt') else "s_memtime") + " s[58:59]", "s_waitcnt lgkmcnt(0)", "s_mov_b32 s59, m0", "s_mov_b32 m0, s69", "s_nop 0",
            "v_writelane_b32 v39, s58, m0", "s_mov_b32 m0, s59", "s_add_u32 s69, s69, 1"]

def dma(voff, sr, soff, off, region, ver, flags=""):
    if sr in (SX, SWQ) and region != 'PK' and ver[1] == 0: flags = OPT['q0f']
    return I(f"buffer_load_dwordx4 {v(voff)}, {srd(sr)}, s{soff} offen offset:{off}{flags} lds", tag=('lds', region, ver))
def touch(voff, sr, soff, fl=""):
    if sr in (SX, SWQ) and voff != 50: fl = OPT['q0tf']
    i = I(f"buffer_load_dword v0, {v(voff)}, {srd(sr)}, s{soff} offen{fl}"); i.wr = []; return i

def kind(x): return (x if isinstance(x, I) else I(x)).kind

class Weave:
    def __init__(self): self.mf = []; self.F = {}
    def put(self, g, *ins): self.F.setdefault(g, []).extend(ins)
    def putf(self, g, *ins): self.F.setdefault(g, [])[0:0] = list(ins)
    def extend(self, other):
        n = len(self.mf); self.mf += other.mf
        for g, l in other.F.items(): self.F.setdefault(n + g, []).extend(l)
        return n
    def cap(self, g):
        ks = [kind(x) for x in self.F.get(g, [])]
        if any(k in ('dma', 'vld', 'vst', 'barrier') for k in ks): return 0
        c = 2
        if any(k in ('ds', 'dsw') for k in ks): c -= 1; ns = sum(k in ('salu', 'wait') for k in ks)
        else: ns = max(0, sum(k in ('salu', 'wait') for k in ks) - 1)
        return c - ns - sum(k == 'valu' for k in ks) - 2 * sum(k == 'trans' for k in ks)
    def empty(self, g):
        return all(kind(x) in ('salu', 'wait') for x in self.F.get(g, [])) and len(self.F.get(g, [])) <= 1
    def place(self, items, start=0, end=None, mingap=0):
        g = start; end = len(self.mf) if end is None else end; lastv = -10**9
        for x in items:
            k = kind(x)
            if k == 'salu':
                self.put(g, x); continue
            if k in ('vst', 'vld', 'dma'):
                if self.F.get(g) and not self.empty(g): g += 1
                while g < end and (not self.empty(g) or g - lastv < mingap): g += 1
                assert g < end, "no room"
                self.put(g, x); lastv = g; g += 1
            else:
                while g < end and self.cap(g) < 1: g += 1
                assert g < end, "no room"
                self.put(g, x)
        return g
    def out(self): return weave(self.mf, self.F)

PKO = 184; PKT = 189; PKL = 191; PKD = [248, 252]
def pack_addr(part):
    if part == 0:
        p = [f"v_lshlrev_b32 v{PKL}, 4, v1", "v_mul_u32_u24 v248, 3277, v1"]
        for k in range(5):
            p += [f"v_add_u32 v249, {64*k*3277}, v248", "v_lshrrev_b32 v249, 16, v249", f"v_mad_u32_u24 v{PKO+k}, v249, s55, v{PKL}",
                  "v_lshlrev_b32 v249, 3, v249", "v_and_b32 v249, 32, v249", f"v_xor_b32 v{PKO+k}, v{PKO+k}, v249"]
        p.append(f"v_add_u32 v{PKO+4}, 4096, v{PKO+4}")
        return p
    return ["v_lshrrev_b32 v248, 4, v1", "v_bfe_u32 v249, v1, 2, 2", "v_lshl_add_u32 v249, v248, 2, v249", "v_mul_u32_u24 v249, 320, v249",
          "v_bfe_u32 v250, v1, 1, 1", "v_lshl_add_u32 v249, v250, 4, v249", "v_and_b32 v250, 1, v1", "v_lshl_add_u32 v249, v250, 3, v249",
          "v_add_u32 v249, s51, v249", "v_and_b32 v248, 1, v248", f"v_lshl_add_u32 v{PKT}, v248, 5, v249", "v_xor_b32 v248, 1, v248",
          f"v_lshl_add_u32 v{PKT+1}, v248, 5, v249"]

def prologue():
    p = []
    A = p.append
    A("s_cmp_ge_u32 s2, 256")
    A("s_cbranch_scc1 L_end")
    A("v_lshrrev_b32 v2, 6, v0")
    A("v_and_b32 v1, 63, v0")
    A("s_and_b32 s52, s2, 7")
    A("v_readfirstlane_b32 s4, v2")
    A("s_lshr_b32 s53, s2, 3")
    A("s_lshr_b32 s54, s53, 3")
    A("s_lshl_b32 s36, s52, 2")
    A("s_add_u32 s36, s36, s54")
    A("s_and_b32 s37, s53, 7")
    A("s_lshr_b32 s55, s36, 4")
    A("s_and_b32 s56, s36, 15")
    A("s_lshr_b32 s5, s4, 1")
    A("s_and_b32 s6, s4, 1")
    A("s_mul_i32 s57, s55, 40")
    A("s_add_u32 s58, s0, s57")
    A("s_addc_u32 s59, s1, 0")
    A("s_load_dwordx2 s[8:9], s[58:59], 0")
    A("s_load_dwordx4 s[72:75], s[58:59], 8")
    A("s_load_dwordx2 s[12:13], s[58:59], 24")
    A("s_load_dwordx2 s[60:61], s[58:59], 32")
    A("s_load_dwordx2 s[28:29], s[0:1], 80")
    A("s_load_dwordx2 s[32:33], s[0:1], 88")
    A("s_load_dwordx2 s[20:21], s[0:1], 96")
    A("v_lshrrev_b32 v40, 4, v1")
    A("v_and_b32 v41, 15, v1")
    A("v_lshrrev_b32 v42, 2, v1")
    A("v_and_b32 v43, 3, v1")
    A("v_bfe_u32 v44, v1, 2, 2")
    A("v_and_b32 v45, 1, v40")
    A("v_lshlrev_b32 v45, 1, v45")
    A("v_xor_b32 v45, v45, v43")
    A("v_lshlrev_b32 v45, 4, v45")
    A("v_mul_u32_u24 v46, 1280, v42")
    A("s_mul_i32 s52, s4, 61440")
    A("v_add3_u32 v2, v45, v46, s52")
    A("v_add_u32 v3, 19456, v2")
    A("v_add_u32 v4, 38912, v2")
    A("v_lshlrev_b32 v45, 2, v40")
    A("v_xor_b32 v45, v45, v41")
    A("v_lshlrev_b32 v45, 4, v45")
    A("v_lshl_add_u32 v45, v40, 13, v45")
    A("s_lshl_b32 s52, s6, 17")
    A("v_add_u32 v5, s52, v45")
    A("v_add_u32 v6, 31744, v5")
    A("v_add_u32 v7, 63488, v5")
    A("v_add_u32 v38, 95232, v5")
    A("s_mul_i32 s41, s4, 3072")
    A("s_lshl_b32 s42, s4, 12")
    A("s_add_u32 s42, s42, 12288")
    A("s_lshl_b32 s43, s4, 13")
    A("s_mov_b32 s7, 0")
    if OPT['stamps']:
        A("s_memrealtime s[68:69]"); A("v_mov_b32 v39, 0")
    A("s_waitcnt lgkmcnt(0)")
    if OPT['stamps']: A("s_mov_b32 s69, 0")
    A("s_mul_i32 s52, s56, 245760")
    A("s_add_u32 s8, s8, s52")
    A("s_addc_u32 s9, s9, 0")
    A("s_mov_b32 s10, 245760")
    A("s_mov_b32 s11, 0x20000")
    A("s_lshl_b32 s52, s37, 1")
    A("s_add_u32 s52, s52, s5")
    A("s_lshl_b32 s53, s52, 8")
    A("s_add_u32 s12, s12, s53")
    A("s_addc_u32 s13, s13, 0")
    A("s_sub_u32 s14, 5242880, s53")
    A("s_mov_b32 s15, 0x20000")
    if OPT['noq']: A("s_mov_b32 s10, 0"); A("s_mov_b32 s14, 4096")
    p += stamp()
    p += q_stage_loads(0, 0, 7)
    if OPT['codepf']:
        A("s_getpc_b64 s[64:65]"); A("L_pc:")
        A("s_sub_u32 s64, s64, L_pc-" + NAME); A("s_subb_u32 s65, s65, 0")
        A("s_mov_b32 s66, L_codeend-" + NAME); A("s_mov_b32 s67, 0x20000")
        A("s_lshr_b32 s53, s2, 3"); A("s_lshl_b32 s53, s53, 2"); A("s_add_u32 s53, s53, s4"); A("s_mul_i32 s53, s53, 640")
        A("v_lshlrev_b32 v58, 7, v1"); A("v_bfrev_b32 v59, 1"); A("v_cmp_gt_u32 vcc, 5, v1"); A("s_nop 1")
        A("v_cndmask_b32 v58, v59, v58, vcc")
        A(touch(58, 64, 53))
    p += q_addr_setup(pf_only=True)
    p += pf_ahead(1, OPT['pf0'])
    A("s_lshl_b32 s57, s56, 3")
    A("s_add_u32 s57, s57, s37")
    A("s_mul_i32 s54, s57, 40960")
    A("s_mul_i32 s53, s4, 320")
    A("s_add_u32 s54, s54, s53")
    A("s_add_u32 s60, s60, s54")
    A("s_addc_u32 s61, s61, 0")
    A(f"s_mov_b32 s62, {0 if OPT['nopack'] else 31*1280+320}")
    A("s_mov_b32 s63, 0x20000")
    A("s_lshl_b32 s53, s56, 5")
    A("s_add_u32 s53, s53, s52")
    A("s_lshl_b32 s53, s53, 17")
    A("s_add_u32 s72, s72, s53"); A("s_addc_u32 s73, s73, 0")
    A("s_add_u32 s74, s74, s53"); A("s_addc_u32 s75, s75, 0")
    A("s_cmp_eq_u32 s6, 0")
    A("s_cselect_b32 s16, s72, s74")
    A("s_cselect_b32 s17, s73, s75")
    A("s_mov_b32 s18, 131072")
    A("s_mov_b32 s19, 0x20000")
    if OPT['nokv']: A("s_mov_b32 s18, 0")
    A("s_mul_i32 s53, s55, 5242880")
    A(f"s_add_u32 s53, s53, {WPOFF:#x}")
    A("s_add_u32 s24, s20, s53"); A("s_addc_u32 s25, s21, 0")
    A("s_mov_b32 s26, %d" % (0 if OPT['nopack'] else 5242880))
    A("s_mov_b32 s27, 0x20000")
    A("s_mul_i32 s51, s4, 10240")
    A("s_add_u32 s51, s51, 98304")
    A("s_mul_i32 s49, s4, 1310720")
    A("s_mul_i32 s53, s57, 10240")
    A("s_add_u32 s49, s49, s53")
    A("s_mul_i32 s53, s36, 1572864")
    A("s_add_u32 s20, s20, s53")
    A("s_addc_u32 s21, s21, 0")
    A("s_mov_b32 s22, 1572864")
    A("s_mov_b32 s23, 0x20000")
    A("s_lshl_b32 s53, s6, 5")
    A("s_add_u32 s53, s53, s52")
    A("s_mul_i32 s48, s53, 24576")
    A("s_lshr_b32 s53, s37, 1")
    A("s_mul_i32 s53, s53, 320")
    A("s_and_b32 s54, s37, 1")
    A("s_mul_i32 s54, s54, 96")
    A("s_mul_i32 s57, s56, 192")
    A("s_add_u32 s54, s54, s57")
    A("s_mul_i32 s54, s54, 2560")
    A("s_mul_i32 s57, s55, 1280")
    A("s_add_u32 s54, s54, s57")
    A("s_add_u32 s54, s54, s53")
    A("s_add_u32 s28, s28, s54")
    A("s_addc_u32 s29, s29, 0")
    A(f"s_mov_b32 s30, {95*2560+320}")
    A("s_mov_b32 s31, 0x20000")
    A("s_mov_b32 s34, 256")
    A("s_mov_b32 s35, 0x20000")
    cb = struct.unpack('<I', struct.pack('<f', math.log2(math.e) / math.sqrt(128.0)))[0]
    A(f"s_mov_b32 s46, {cb:#x}")
    A(f"s_mov_b32 s47, {cb:#x}")
    A("v_lshlrev_b32 v45, 1, v40")
    A("v_xor_b32 v45, v45, v41")
    A("v_lshlrev_b32 v45, 4, v45")
    A("v_lshl_add_u32 v8, v40, 8, v45")
    A("v_xor_b32 v9, 0x80, v8")
    A("v_and_b32 v45, 7, v41")
    A("v_lshlrev_b32 v45, 1, v45")
    A("v_xor_b32 v45, v45, v40")
    A("v_lshlrev_b32 v45, 4, v45")
    A("v_lshl_add_u32 v45, v41, 8, v45")
    A("s_lshl_b32 s52, s5, 14")
    A("v_add_u32 v10, s52, v45")
    for ks in range(1, 4): A(f"v_xor_b32 v{10+ks}, {64*ks}, v10")
    for ks in range(4): A(f"v_add_u32 v{14+ks}, 0x10000, v{10+ks}")
    A("v_lshl_add_u32 v45, v40, 2, v44")
    A("v_and_b32 v46, 7, v45")
    A("v_lshlrev_b32 v46, 1, v46")
    A("v_lshrrev_b32 v47, 1, v43")
    A("v_xor_b32 v46, v46, v47")
    A("v_lshlrev_b32 v46, 4, v46")
    A("v_lshl_add_u32 v46, v45, 8, v46")
    A("v_and_b32 v47, 1, v43")
    A("v_lshl_add_u32 v46, v47, 3, v46")
    A("s_add_u32 s52, s52, 8192")
    A("v_add_u32 v18, s52, v46")
    for i in range(1, 8): A(f"v_xor_b32 v{18+i}, {32*i}, v18")
    for i in range(8): A(f"v_add_u32 v{26+i}, 0x10000, v{18+i}")
    p += q_addr_setup(pf_only=False)
    return p

def q_stage_loads(gen, s, npieces):
    reg = f"R{s&3}"; ver = ('Q', gen, s)
    p = [f"s_mov_b32 s{S_XS}, {64*s}", f"s_mov_b32 s{S_WS}, {262144*s}", f"s_add_u32 m0, s{S_MX}, {SLOT[s&3]}", "s_nop 0"]
    for k in range(3): p.append(dma(V_XO[k], SX, S_XS, 1024*k, reg, ver))
    if npieces > 3: p += [f"s_add_u32 m0, s{S_MW}, {SLOT[s&3]}", "s_nop 0"]
    for k in range(npieces - 3): p.append(dma(V_WQO[k], SWQ, S_WS, 1024*k, reg, ver))
    return p

def pf_ahead(s0, s1, rw=62, rx=63):
    if not OPT['pf']: return []
    p = []
    for s in range(s0, s1):
        p += [f"s_mov_b32 s53, {262144*s}", touch(rw, SWQ, 53)]
        if s % 2 == 0 or s == s0: p += [f"s_mov_b32 s53, {64*(s&~1)}", touch(rx, SX, 53)]
    return p

def qA(mt, gen, s):
    ks, t = mt >> 1, mt & 1
    d = WA + 4 * (mt & 3)
    return [I(f"ds_read_b64_tr_b16 {a(d+2*hh,2)}, {v(V_QWA+ks)} offset:{1024*hh+8*t}", src=(f"R{s&3}", ('Q', gen, s))) for hh in range(2)]
def qB(g, gen, s):
    return I(f"ds_read_b128 {a(XB[s&1]+4*g,4)}, {v(V_QXA)} offset:{1024*g}", src=(f"R{s&3}", ('Q', gen, s)))

def q_addr_setup(pf_only=None):
    p = []; A = p.append
    if pf_only is not False:
        T0, T1 = (58, 59) if pf_only else (47, 48)
        D0, D1 = (62, 63) if pf_only else (V_PFW, V_PFX)
        A("s_and_b32 s53, s36, 3"); A("s_lshl_b32 s53, s53, 1"); A("s_add_u32 s53, s53, s6"); A("s_lshl_b32 s53, s53, 15")
        A(f"v_lshrrev_b32 v{T0}, 1, v1"); A(f"v_lshlrev_b32 v{T0}, 13, v{T0}"); A(f"v_and_b32 v{T1}, 1, v1"); A(f"v_lshl_add_u32 v{T0}, v{T1}, 7, v{T0}")
        A(f"v_add_u32 v{T0}, s53, v{T0}")
        A(f"v_bfrev_b32 v{T1}, 1")
        A("v_cmp_gt_u32 vcc, 8, v1"); A("s_nop 1")
        A(f"v_cndmask_b32 v{D0}, v{T1}, v{T0}, vcc")
        A("s_lshl_b32 s53, s37, 2"); A("s_add_u32 s53, s53, s4"); A("s_mul_i32 s53, s53, 7680")
        A(f"v_mul_u32_u24 v{T0}, 1280, v1"); A(f"v_add_u32 v{T0}, s53, v{T0}")
        A("v_cmp_gt_u32 vcc, 6, v1"); A("s_nop 1")
        A(f"v_cndmask_b32 v{D1}, v{T1}, v{T0}, vcc")
        if pf_only: return p
    else:
        A(f"v_mov_b32 v{V_PFW}, v62"); A(f"v_mov_b32 v{V_PFX}, v63")
    A("v_lshlrev_b32 v57, 4, v1")
    A("v_lshlrev_b32 v47, 7, v1"); A("v_bfrev_b32 v48, 1"); A("v_cmp_gt_u32 vcc, 16, v1"); A("s_nop 1")
    A("v_cndmask_b32 v56, v48, v47, vcc")
    A("v_lshrrev_b32 v47, 4, v1")
    A("v_bfe_u32 v48, v1, 2, 1")
    A("v_lshlrev_b32 v48, 1, v48")
    A("v_xor_b32 v48, v48, v47")
    A("v_lshlrev_b32 v48, 4, v48")
    A("v_and_b32 v49, 15, v1")
    A("v_lshl_add_u32 v48, v49, 6, v48")
    A("s_mul_i32 s52, s6, 6144")
    A(f"v_add_u32 v{V_QXA}, s52, v48")
    A("v_bfe_u32 v48, v1, 2, 2")
    A("v_and_b32 v49, 3, v1")
    A("v_lshl_add_u32 v49, v48, 2, v49")
    A("v_lshlrev_b32 v49, 4, v49")
    A("v_lshl_add_u32 v48, v47, 3, v48")
    A("v_lshl_add_u32 v49, v48, 8, v49")
    A("s_lshl_b32 s52, s5, 13")
    A("s_add_u32 s52, s52, 12288")
    A(f"v_add_u32 v{V_QWA}, s52, v49")
    for ks in range(1, 4): A(f"v_xor_b32 v{V_QWA+ks}, {64*ks}, v{V_QWA}")
    return p

def q_pre(gen):
    p = []; A = p.append
    A(f"s_mov_b32 s{S_KS}, 0")
    A(W('vm', need_tag(lambda t: t[2] == ('Q', gen, 0))))
    A("s_barrier")
    p += stamp()
    for mt in range(3): p += qA(mt, gen, 0)
    for g in range(6): A(qB(g, gen, 0))
    p += q_stage_loads(gen, 1, 7) if gen == 0 else q_stage_loads(gen, 3, 3)
    A(W('lgkm', need_regs(a(WA,4), a(XB[0],8))))
    return p

def kv_batch(gen, tile):
    reg = f"R{(tile-1)&3}"; ver = ('KV', gen, tile); base = SLOT[(tile-1)&3]
    L = []
    for grp in range(2):
        L.append(f"s_add_u32 m0, s{S_MK}, {base+4096*grp}")
        for k in range(4): L.append(dma(V_KV[k&1], SKV, S_KS, 1024*k, reg, ver, NT))
        L.append(f"s_add_u32 s{S_KS}, s{S_KS}, 4096")
    return L

def q_step(gen, s):
    w = Weave(); put = w.put
    for mt in range(8):
        for g in range(6):
            d = v(ACC + 32*g + 4*mt, 4)
            w.mf.append(M(d, a(WA+4*(mt&3),4), a(XB[s&1]+4*g,4), "0" if s == 0 else d))
    last = s == 19
    for mt in range(3, 8):
        r = qA(mt, gen, s); put(6*(mt-3)+1, r[0]); put(6*(mt-3)+2, r[1])
    for mt in range(1, 8):
        put(6*mt-1, W('lgkm', need_regs(a(WA+4*(mt&3),4))))
    put(0, W('lgkm', need_regs(a(XB[s&1]+8,8))))
    w.put(3, W('lgkm', need_regs(a(XB[s&1]+16,8))))
    def mdma(gp, m0, ins, *after):
        put(gp-1, m0); put(gp, ins, *after)
    HG = (3, 9, 15, 21); TG = (35, 41, 47); XG = (6, 12, 18, 24)
    if gen == 0 and s == 0:
        put(0, "s_mov_b32 s54, 128", f"s_mov_b32 s55, {2*262144}")
        seq = [(f"s_add_u32 m0, s{S_MX}, {SLOT[2]}", dma(V_XO[k], SX, 54, 1024*k, "R2", ('Q', 0, 2))) for k in range(3)]
        seq += [(f"s_add_u32 m0, s{S_MW}, {SLOT[2]}", dma(V_WQO[k], SWQ, 55, 1024*k, "R2", ('Q', 0, 2))) for k in range(4)]
        seq += [(f"s_add_u32 m0, s{S_MX}, {SLOT[3]}", dma(V_XO[k], SX, S_XS, 1024*k, "R3", ('Q', 0, 3))) for k in range(3)]
        put(1, f"s_mov_b32 s{S_XS}, {64*3}"); put(2, f"s_mov_b32 s{S_WS}, {262144*3}")
        for (m0, ins), gp in zip(seq, (3, 6, 9, 12, 15, 18, 21, 24, 28, 30)): mdma(gp, m0, ins)
        HG = (35, 38+3, 44+3, None)
        for k, gp in enumerate((35, 41, 47)):
            mdma(gp, f"s_add_u32 m0, s{S_MW}, {SLOT[3]}", dma(V_WQO[k], SWQ, S_WS, 1024*k, "R3", ('Q', 0, 3)))
    elif gen == 0 and s == 1:
        mdma(3, f"s_add_u32 m0, s{S_MW}, {SLOT[3]}", dma(V_WQO[3], SWQ, S_WS, 3072, "R3", ('Q', 0, 3)))
        put(4, f"s_add_u32 s{S_XS}, s{S_XS}, 64", f"s_add_u32 s{S_WS}, s{S_WS}, 262144")
        seq = [(f"s_add_u32 m0, s{S_MX}, {SLOT[0]}", dma(V_XO[k], SX, S_XS, 1024*k, "R0", ('Q', 0, 4))) for k in range(3)]
        seq += [(f"s_add_u32 m0, s{S_MW}, {SLOT[0]}", dma(V_WQO[k], SWQ, S_WS, 1024*k, "R0", ('Q', 0, 4))) for k in range(4)]
        for (m0, ins), gp in zip(seq, (6, 9, 12, 15, 18, 21, 24)): mdma(gp, m0, ins)
        put(27, f"s_add_u32 s{S_XS}, s{S_XS}, 64")
        put(28, f"s_add_u32 s{S_WS}, s{S_WS}, 262144")
    elif s <= 16:
        sp = s + 3
        for k in range(4):
            mdma(HG[k], f"s_add_u32 m0, s{S_MW}, {SLOT[sp&3]}", dma(V_WQO[k], SWQ, S_WS, 1024*k, f"R{sp&3}", ('Q', gen, sp)))
        put(22, f"s_add_u32 s{S_XS}, s{S_XS}, 64")
        put(27, f"s_add_u32 s{S_WS}, s{S_WS}, 262144")
    if s <= 15 and not (gen == 0 and s == 0):
        sp = s + 4
        put(TG[0]-1, f"s_add_u32 m0, s{S_MX}, {SLOT[sp&3]}")
        for k in range(3): put(TG[k], dma(V_XO[k], SX, S_XS, 1024*k, f"R{sp&3}", ('Q', gen, sp)))
    kvp = {13: [(0,0,XG[0]), (0,1,XG[1]), (0,2,XG[2])], 14: [(0,3,XG[0]), (0,4,XG[1]), (0,5,XG[2])], 15: [(0,6,XG[0]), (0,7,XG[2])],
           16: [(1,0,35), (1,1,41), (1,2,47)], 17: [(1,3,3), (1,4,9), (1,5,15), (1,6,21), (1,7,41), (2,0,47)],
           18: [(2,1,9), (2,2,21), (2,3,35), (2,4,47)], 19: [(2,5,9), (2,6,21), (2,7,35)]}.get(s, [])
    if gen == 0 and s < 16:
        t0 = OPT['t0step']
        kvp = [(0, 2*(s-t0), XG[2]), (0, 2*(s-t0)+1, XG[3])] if t0 <= s < t0+4 else []
        if OPT['pf'] and 9 <= s <= 12:
            q = s - 9
            if q == 0:
                w.place(["v_lshrrev_b32 v50, 1, v1", "v_and_b32 v51, 1, v1", "v_lshlrev_b32 v50, 13, v50", "v_lshl_add_u32 v50, v51, 7, v50",
                         "v_bfrev_b32 v51, 1", "v_cmp_gt_u32 vcc, 10, v1"], 4)
                put(10, "v_cndmask_b32 v50, v51, v50, vcc")
                put(0, f"s_and_b32 s55, s{S_C}, 15", "s_lshl_b32 s55, s55, 1"); put(4, "s_add_u32 s55, s55, s6")
                put(10, f"s_mul_i32 s55, s55, {20*8192}"); put(11, "s_add_u32 s55, s55, 4096")
            put(XG[2], touch(50, SWQ, 55), f"s_add_u32 s55, s55, {5*8192}")
        if OPT['kvt'] and s >= t0+4:
            q = s - (t0+4)
            mdma(XG[3], f"s_mov_b32 s54, {8192 + 2048*q}", touch(56, SKV, 54, OPT['kvtf']))
    for (tile, pc, gp) in kvp:
        base = XSLOT if tile == 0 else SLOT[(tile-1)&3]
        ins = dma(V_KV[pc & 1], SKV, S_KS, 1024*(pc & 3), 'X' if tile == 0 else f"R{(tile-1)&3}", ('KV', gen, tile), NT)
        mdma(gp, f"s_add_u32 m0, s{S_MK}, {base + 4096*(pc>>2)}", ins, *([f"s_add_u32 s{S_KS}, s{S_KS}, 4096"] if pc & 3 == 3 else []))
    if OPT['pf']:
        st = PF0.get(s, ()) if gen == 0 else ((s+8,) if (s < 12 and OPT['pf1']) else ())
        items = []
        for sg in st:
            items.append((f"s_mov_b32 s53, {262144*sg}", touch(V_PFW, SWQ, 53)))
            if sg % 2 == 0: items.append((f"s_mov_b32 s53, {64*sg}", touch(V_PFX, SX, 53)))
        for (sm, ins), gp in zip(items, (XG + (30,)) if not kvp else (XG[0], XG[1], 30, 28, 45)): mdma(gp, sm, ins)
        assert len(items) <= 5
    if not last:
        dl = SLOT[(s+1)&3] - SLOT[s&3]
        for k, gp in enumerate((27, 27, 28, 28, 29)):
            put(gp, f"v_add_u32 v{V_QXA+k}, {dl:#x}, v{V_QXA+k}" if dl > 0 else f"v_subrev_u32 v{V_QXA+k}, {-dl:#x}, v{V_QXA+k}")
    nxt = ('Q', gen, s+1) if not last else ('KV', gen, 0)
    w.putf(28, W('vm', need_tag(lambda t: t[2] == nxt)))
    put(31, W('lgkm', need_all), "s_barrier")
    if not last:
        r0 = qA(0, gen, s+1); r1 = qA(1, gen, s+1); r2 = qA(2, gen, s+1)
        w.putf(32, r0[0]); w.putf(33, r0[1]); w.putf(36, r1[0]); w.putf(37, r1[1]); w.putf(42, r2[0]); w.putf(43, r2[1])
        for g, gp in zip(range(6), (34, 38, 39, 40, 44, 45)): w.putf(gp, qB(g, gen, s+1))
        put(46, W('lgkm', need_regs(a(WA,4), a(XB[(s+1)&1],8))))
    drop = OPT.get('qdrop', ())
    if drop:
        for g in list(w.F): w.F[g] = [x for x in w.F[g] if kind(x) not in drop]
    return w
PF0 = {2: (9, 10, 11), 3: (12, 13, 14), 4: (15, 16, 17), 5: (18, 19)}

V_RC0 = 58; V_OT = 47; V_OPK = 55 - 0
def o_unit(g, sp, rc, tb, pk, voff, gen, pkmul=False):
    q = []
    for k in range(8): q.append(f"v_accvgpr_read_b32 v{tb+k}, a{OACC(2*sp, g)+k}")
    if pkmul:
        e = rc & ~1; sel = rc & 1
        for k in range(4): q.append(f"v_pk_mul_f32 {v(tb+2*k,2)}, {v(tb+2*k,2)}, {v(e,2)} op_sel:[0,{sel}] op_sel_hi:[1,{sel}]")
    else:
        for k in range(8): q.append(f"v_mul_f32 v{tb+k}, v{rc}, v{tb+k}")
    for k in range(4): q.append(f"v_cvt_pk_bf16_f32 v{pk+k}, v{tb+2*k}, v{tb+2*k+1}")
    return q
def o_store(g, sp, pk, voff, gen, sreg):
    off = (sp * 6 + g) * 1024
    return [f"s_add_u32 s{sreg}, s{S_OS}, {off & ~4095}",
            I(f"buffer_store_dwordx4 {v(pk,4)}, v{voff}, {srd(SO)}, s{sreg} offen offset:{off & 4095}{OPT['ostf']}", tag=('ost', 0, gen))]

def q_first(gen):
    w = Weave()
    if gen == 0:
        for s in range(16): w.extend(q_step(0, s))
    else:
        for s in range(OPT['q1steps']): w.extend(q_step(1, s))
        gv = 0; gs = -1
        for g in range(6):
            for sp in range(4):
                u = o_unit(g, sp, V_RC0+g, 48, V_ONES, 57, 0)
                gv = max(gv, int((g*4+sp) * OPT['q1span'] * 2) - 8)
                gv = w.place(u[:16], gv)
                gv = max(gv, gs + 2)
                gv = w.place(u[16:], gv)
                gs = gv + 1
                while not w.empty(gs): gs += 1
                w.put(gs, *o_store(g, sp, V_ONES, 57, 0, 56))
        print("   O-epilogue woven up to gap", gs, "of", len(w.mf))
    for s in (4, 8, 12): w.put(48*s - 1, *stamp(True))
    return w.out()

def kread(f, gen, tile, aset, off):
    kt, ks = f >> 2, f & 3
    reg = 'X' if tile == 0 else f"R{(tile-1)&3}"
    return I(f"ds_read_b128 {v(KF+4*f,4)}, {v(aset+ks)} offset:{off+4096*kt}", src=(reg, ('KV', gen, tile)))
def vread(i, t, gen, tile, aset, off):
    reg = 'X' if tile == 0 else f"R{(tile-1)&3}"
    return I(f"ds_read_b64_tr_b16 {v(VF[tile&1]+4*i+2*t,2)}, {v(aset+i)} offset:{off+4096*t}", src=(reg, ('KV', gen, tile)))

def rowmax_bcast(n):
    return [f"v_mov_b32 v{n+1}, v{n}", "s_nop 1", f"v_permlane32_swap_b32 v{n}, v{n+1}", f"v_max_f32 v{n}, v{n}, v{n+1}",
            f"v_mov_b32 v{n+1}, v{n}", "s_nop 1", f"v_permlane16_swap_b32 v{n}, v{n+1}", f"v_max_f32 v{n}, v{n}, v{n+1}",
            f"v_mul_f32 v{n}, -1.0, v{n}", f"v_mov_b32 v{n+1}, v{n}", f"v_mov_b32 v{n+2}, v{n}", f"v_mov_b32 v{n+3}, v{n}"]
def est_max(g):
    n = V_NEGM + 4*g
    return [f"v_max3_f32 v{n}, v{n}, v{n+1}, v{n+2}", f"v_max_f32 v{n}, v{n}, v{n+3}"] + rowmax_bcast(n)

def transition(gen):
    p = []; A = p.append
    p += stamp()
    L3 = kv_batch(gen, 3)
    A("s_lshl_b32 s52, s7, 2"); A("s_sub_u32 s52, s52, s4"); A("s_cmp_eq_u32 s52, 4"); A("s_cbranch_scc1 L_sig0")
    A("L_nosig0:")
    A("s_add_u32 s12, s12, 4096"); A("s_addc_u32 s13, s13, 0")
    A("s_sub_u32 s14, s14, 4096")
    A("s_cmp_eq_u32 s7, 0"); A("s_cselect_b32 s14, s14, 0"); A("s_cselect_b32 s10, s10, 0")
    A(L3[0]); A("s_nop 1"); A(L3[1])
    def pack(g):
        b = ACC + 32*g; q = []
        for k in range(16): q.append(f"v_pk_mul_f32 {v(b+2*k,2)}, {v(b+2*k,2)}, s[46:47]")
        for k in range(16): q.append(f"v_cvt_pk_bf16_f32 v{b+k}, v{b+2*k}, v{b+2*k+1}")
        if g < 4:
            for k in range(16): q.append(f"v_accvgpr_write_b32 a{192+16*g+k}, v{b+k}")
        return q
    def est(g):
        d = v(V_NEGM+4*g, 4)
        return [M(d, v(KF+4*ks,4), QF(g, ks), "0" if ks == 0 else d) for ks in range(4)]
    p += pack(0)
    for ks in range(4): A(f"v_add_u32 v{52+ks}, 0x10000, v{V_KA[1]+ks}")
    for f in range(8): A(kread(f, gen, 0, 52, 0))
    A(L3[2])
    p += pack(1)
    for i in range(8): A(f"v_add_u32 v{56+i}, 0x10000, v{V_VA[1]+i}")
    for i in range(8):
        for t in range(2): A(vread(i, t, gen, 0, 56, 0))
    A(L3[3])
    A(W('lgkm', need_regs(v(KF, 16))))
    p += est(0); p += est(1)
    p += pack(2)
    A(L3[4]); A(L3[5]); A(L3[6])
    p += est_max(0); p += est_max(1)
    p += est(2)
    A(L3[7])
    p += pack(3)
    A(L3[8]); A("s_nop 0")
    p += est(3)
    p += pack(4)
    A(L3[9])
    p += est_max(2); p += est_max(3)
    p += est(4)
    p += pack(5)
    A(L3[10]); A(L3[11])
    p += est(5)
    p += est_max(4)
    for k in range(32): A(f"v_accvgpr_write_b32 a{OACC(0,5)+k}, 0")
    for k in range(4): A(f"v_mov_b32 v{LREG(5)+k}, 0")
    for i in range(4): A(f"v_mov_b32 v{V_ONES+i}, 0x3f803f80")
    p += est_max(5)
    A(W('lgkm', need_all))
    A(f"s_mov_b32 s{S_CNT}, 3")
    p += stamp()
    return p

DG15 = [(0, 12), (0, 16), (1, 3), (1, 8), (1, 16), (2, 6), (2, 16), (3, 8)]
EXPG = [7, 9, 11, 13, 15, 17, 19, 21]
CVTG = [10, 14, 18, 22]
def a_iter(gen, t):
    mf = []; base = {}
    groups = range(6) if t < 16 else [0]
    for g in groups:
        base[g] = len(mf)
        if t < 16:
            for kt in range(2):
                d = v(SB[g&1]+4*kt, 4)
                for ks in range(4):
                    mf.append(M(d, v(KF+4*(4*kt+ks),4), QF(g, ks), v(V_NEGM+4*g,4) if ks == 0 else d))
        pt, pg = (t, g-1) if g > 0 else (t-1, 5)
        if pt >= 0:
            z = (pt == 0 and pg < 5)
            for i in range(8):
                d = a(OACC(i, pg), 4)
                mf.append(M(d, v(VF[pt&1]+4*i,4), v(PB[pg&1],4), "0" if z else d))
            d = v(LREG(pg), 4)
            mf.append(M(d, v(V_ONES,4), v(PB[pg&1],4), "0" if z else d))
    return mf, base

def softmax_ops(g):
    e = [f"v_exp_f32 v{SB[g&1]+k}, v{SB[g&1]+k}" for k in range(8)]
    c = [f"v_cvt_pk_bf16_f32 v{PB[g&1]+k}, v{SB[g&1]+2*k}, v{SB[g&1]+2*k+1}" for k in range(4)]
    return e, c

def a_tile(gen, t):
    w = Weave(); w.mf, base = a_iter(gen, t)
    put, putf = w.put, w.putf
    short0 = (t == 0)
    def pos(g, rel):
        if rel >= 17: return pos(g+1, rel-17) if g < 5 else None
        return base[g] + rel
    if t > 0:
        e, c = softmax_ops(5)
        for k in range(8):
            if EXPG[k] >= 17: put(EXPG[k]-17, e[k])
        for k in range(4):
            if CVTG[k] >= 17: put(CVTG[k]-17, c[k])
    for g in range(6):
        e, c = softmax_ops(g)
        if g == 0 and short0:
            put(7, "s_nop 3", *e[:4])
            put(7, c[0], c[1])
            for k in range(4, 8): put(base[1] + (k-4), e[k])
            put(base[1]+4, c[2]); put(base[1]+5, c[3])
            continue
        for k in range(8):
            q = pos(g, EXPG[k])
            if q is not None: put(q, e[k])
        for k in range(4):
            q = pos(g, CVTG[k])
            if q is not None: put(q, c[k])
    if t > 0:
        for f in (2, 4, 6):
            putf(f-1, W('lgkm', need_regs(v(KF+4*f,8))))
    if t < 15:
        bg = 7 if short0 else 8
        putf(bg-1, W('vm', (need_all if t == 13 else need_tag(lambda x: x[2] == ('KV', gen, t+1)))))
        putf(bg, "s_barrier")
    else:
        putf(8, "s_barrier")
    if t < 15:
        sl = t & 3; ka = V_KA[sl >> 1]; va = V_VA[sl >> 1]; off = 32768 * (sl & 1)
        k = 0
        for g in range(1, 5):
            for rel in (1, 5, 10, 14):
                putf(base[g]+rel, vread(k >> 1, k & 1, gen, t+1, va, off)); k += 1
        for f, rel in enumerate((1, 3, 5, 6, 8, 10, 12, 14)):
            putf(base[5]+rel, kread(f, gen, t+1, ka, off))
        put(base[5]+16, W('lgkm', need_regs(v(KF,8))))
    if t == 15:
        putf(base[0]+2, f"s_lshl_b32 s52, s{S_C}, 2"); putf(base[0]+4, f"s_lshr_b32 s53, s{S_C}, 4")
        putf(base[0]+7, "s_lshl_b32 s53, s53, 2"); putf(base[1]+0, "s_add_u32 s53, s53, 128")
        put(base[1]+5, f"v_mov_b32 v0, s53"); put(base[1]+10, f"v_writelane_b32 v0, s52, 0")
        putf(base[1]+2, "s_lshl_b32 s54, s4, 28")
        fl = I(f"buffer_load_dword v0, v0, {srd(SDBG)}, s54 offen sc1", tag=('flag', 0, 0))
        if gen == 0: fl.wr = []
        putf(base[3]+8, fl)
    if t == 13:
        sl = [(0, 12), (0, 16), (1, 12), (2, 3), (2, 16), (3, 12), (3, 16), (4, 3), (4, 8), (4, 12)]
        for k, (g, rel) in enumerate(sl):
            h, x = divmod(k, 5)
            putf(base[g]+rel-1, f"s_add_u32 m0, s51, {5120*h + (4096 if x == 4 else 0)}")
            if x == 0: putf(base[g]+rel-3, f"s_mov_b32 s55, {16*1280*h}")
            putf(base[g]+rel, dma(PKO+x, SWO, 55, 1024*(x&3), 'PK', gen, NT))
    if t == 15:
        putf(base[0]+9, W('vm', need_tag(lambda x: x[1] == 'PK')))
        for k in range(3): putf(base[0]+(0, 11, 13)[k], f"s_add_u32 s{55+k}, s{S_OPA}, {4096*k}")
        dsg = [base[0]+10, base[0]+14] + sorted(base[g]+rel for g in range(1, 6) for rel in (1, 5, 10, 14))
        stg = [base[g]+rel for g in range(1, 6) for rel in (3, 6, 8, 12, 16) if not (g < 4 and (g, rel) in DG15)]
        for nt in range(10):
            d = PKD[nt & 1]
            for h in range(2):
                putf(dsg[2*nt+h], I(f"ds_read_b64_tr_b16 {v(d+2*h,2)}, v{PKT+(nt&1)} offset:{5120*h+64*(nt>>1)}", src=('PK', gen)))
            sg = min(x for x in stg if x >= dsg[2*nt+1] + 5)
            st = [W('lgkm', need_regs(v(d,4))), I(f"buffer_store_dwordx4 {v(d,4)}, v{PKL}, {srd(SWP)}, s{55+nt//4} offen offset:{1024*(nt%4)} sc1", tag=('pst', 0, 0))]
            stg.remove(sg); putf(sg, *st)
            assert nt + 2 >= 10 or sg < dsg[2*(nt+2)], (nt, sg)
    dg = [(1, 3), (1, 8), (1, 16), (2, 6), (2, 12), (3, 3), (3, 8), (3, 16)]
    if t == 15: dg = DG15
    P_ = lambda k: base[dg[k][0]] + dg[k][1]
    if t <= 12:
        L = kv_batch(gen, t+4)
        putf(base[1]+2 if not short0 else base[1]+2, L[0])
        for k in range(4): putf(P_(k), L[1+k])
        putf(base[2]+7, L[5]); putf(base[2]+9, L[6])
        for k in range(4): putf(P_(4+k), L[7+k])
        putf(base[4]+0, L[11])
    else:
        s = t - 13; reg = f"R{s}"; ver = ('Q', gen+1, s)
        putf(base[0]+9, f"s_mov_b32 s{S_XS}, {64*s}")
        for k in range(3): putf(P_(k)-1, f"s_add_u32 m0, s{S_MX}, {SLOT[s]}")
        putf(base[0]+13, f"s_mov_b32 s{S_WS}, {262144*s}")
        for k in range(3): putf(P_(k), dma(V_XO[k], SX, S_XS, 1024*k, reg, ver))
        for k in range(4): putf(P_(3+k)-1, f"s_add_u32 m0, s{S_MW}, {SLOT[s]}")
        for k in range(4): putf(P_(3+k), dma(V_WQO[k], SWQ, S_WS, 1024*k, reg, ver))
    if t == 0:
        putf(0, "s_movk_i32 s55, 960"); w.place(pack_addr(0), 1)
    if t == 14: w.place(pack_addr(1), 3)
    return w.out() + getattr(w, 'late', [])

def a_drain(gen):
    mf, base = a_iter(gen, 16)
    e, c = softmax_ops(5)
    p = [e[5], e[6], e[7], c[2], c[3], "s_nop 1"] + mf
    p += [f"s_mov_b32 s52, {OPT['thr']:#x}",
          f"v_add_f32 v{TMPA+1}, v{LREG(0)}, v{LREG(1)}", f"v_add_f32 v{TMPA+2}, v{LREG(2)}, v{LREG(3)}",
          f"v_add_f32 v{TMPA+1}, v{TMPA+1}, v{LREG(4)}", f"v_add_f32 v{TMPA+1}, v{TMPA+1}, v{TMPA+2}", "s_nop 5",
          f"v_add_f32 v{TMPA+1}, v{TMPA+1}, v{LREG(5)}",
          f"v_cmp_nge_f32 vcc, s52, v{TMPA+1}", "s_nop 4", "s_cbranch_vccnz L_slow", "L_slowret:"]
    return p

def slow_path():
    p = ["L_slow:"]; A = p.append
    SK, SV = 80, 64
    A("s_lshl_b32 s52, s7, 21")
    A("s_add_u32 s80, s72, s52"); A("s_addc_u32 s81, s73, 0"); A("s_mov_b32 s82, 131072"); A("s_mov_b32 s83, 0x20000")
    A("s_add_u32 s64, s74, s52"); A("s_addc_u32 s65, s75, 0"); A("s_mov_b32 s66, 131072"); A("s_mov_b32 s67, 0x20000")
    ka, va = TMPA, TMPA + 1
    A(f"v_and_b32 v{ka}, 15, v1"); A(f"v_lshrrev_b32 v{va}, 4, v1")
    A(f"v_lshlrev_b32 v{TMPA+2}, 1, v{ka}")
    A(f"v_lshlrev_b32 v{ka}, 8, v{ka}"); A(f"v_lshl_add_u32 v{ka}, v{va}, 4, v{ka}")
    A(f"v_lshl_add_u32 v{va}, v{va}, 10, v{TMPA+2}")
    for g in range(6): A(f"v_mov_b32 v{V_NEGM+4*g}, 0xff800000")
    def kloads():
        q = []
        for kt in range(2):
            q.append(f"s_add_u32 s53, s52, {4096*kt}")
            for ks in range(4): q.append(f"buffer_load_dwordx4 {v(KF+4*(4*kt+ks),4)}, v{ka}, {srd(SK)}, s53 offen offset:{64*ks}")
        return q
    def schain(g, c0):
        q = []
        for kt in range(2):
            d = v(SB[0]+4*kt, 4)
            for ks in range(4): q.append(M(d, v(KF+4*(4*kt+ks),4), QF(g, ks), c0 if ks == 0 else d))
        return q + ["s_nop 7", "s_nop 3"]
    A("s_mov_b32 s52, 0")
    A("L_slow1:")
    p += kloads(); A("s_waitcnt vmcnt(0)")
    for g in range(6):
        p += schain(g, "0")
        n = V_NEGM + 4*g; s0 = SB[0]
        for k in range(4): A(f"v_max3_f32 v{n}, v{n}, v{s0+2*k}, v{s0+2*k+1}")
    A("s_add_u32 s52, s52, 8192"); A("s_cmp_lg_u32 s52, 131072"); A("s_cbranch_scc1 L_slow1")
    for g in range(6): p += rowmax_bcast(V_NEGM + 4*g)
    for r in range(192): A(f"v_accvgpr_write_b32 a{r}, 0")
    for g in range(6):
        for k in range(4): A(f"v_mov_b32 v{LREG(g)+k}, 0")
    A("s_mov_b32 s52, 0")
    A("L_slow2:")
    p += kloads()
    for t in range(2):
        A(f"s_add_u32 s53, s52, {4096*t}")
        for i in range(8):
            for j in range(4):
                A(f"buffer_load_ushort v{VF[j&1]+4*i+2*t+(j>>1)}, v{va}, {srd(SV)}, s53 offen offset:{256*j+32*i}")
        A("s_waitcnt vmcnt(0)")
    for r in range(32): A(f"v_lshl_or_b32 v{VF[0]+r}, v{VF[1]+r}, 16, v{VF[0]+r}")
    for g in range(6):
        p += schain(g, v(V_NEGM+4*g, 4))
        for k in range(8): A(f"v_exp_f32 v{SB[0]+k}, v{SB[0]+k}")
        A("s_nop 0")
        for k in range(4): A(f"v_cvt_pk_bf16_f32 v{PB[0]+k}, v{SB[0]+2*k}, v{SB[0]+2*k+1}")
        A("s_nop 1")
        for i in range(8):
            d = a(OACC(i, g), 4); A(M(d, v(VF[0]+4*i,4), v(PB[0],4), d))
        d = v(LREG(g), 4); A(M(d, v(V_ONES,4), v(PB[0],4), d))
        A("s_nop 3")
    A("s_add_u32 s52, s52, 8192"); A("s_cmp_lg_u32 s52, 131072"); A("s_cbranch_scc1 L_slow2")
    A("s_nop 7"); A("s_nop 3")
    A("s_branch L_slowret")
    return p

def gen0_end():
    p = []; A = p.append
    for g in range(6): A(f"v_rcp_f32 v{V_RC0+g}, v{LREG(g)}")
    A("s_add_u32 s16, s16, 0x200000"); A("s_addc_u32 s17, s17, 0")
    A("s_mov_b32 s7, 1")
    A("s_mov_b32 s26, 0"); A("s_mov_b32 s62, 0")
    if OPT['nost0']: A(f"s_add_u32 s{S_OS}, s{S_OS}, 0x8000000")
    p += q_addr_setup()
    if OPT['pf1']: p += pf_ahead(3, 8, V_PFW, V_PFX)
    p += stamp()
    return p

OPK = 64
OPB = [184, 208, 232]
V_AO = [8, 9]; V_BO = [10, 11]; HELD = [12, 16, 20, 24, 28, 32, 40, 44, 48, 52, 56]; HELDN = list(range(2, 24, 2)); V_OSV = 60; V_RC1 = 2
def opacc(nt, g): return v(OPK + 4*(nt*6+g), 4) if nt < 5 else a(4*((nt-5)*6+g), 4)
def opA(s, nt): return 120 + 4 * ((10*(s % 3) + nt + 18) % 30)
def ldA(s, nt):
    half, x = divmod(nt, 5)
    return I(f"buffer_load_dwordx4 {a(opA(s,nt),4)}, {v(V_AO[half])}, {srd(SWP)}, s{53 if x < 4 else 54} offen offset:{1024*(x&3)} sc1", tag=('opa', 0, ('OP', s)))
def ldB(s, g):
    return I(f"buffer_load_dwordx4 {v(OPB[s%3]+4*g,4)}, {v(V_BO[g//3])}, {srd(SO)}, s{S_OPB} offen offset:{1024*(g%3)} sc1", tag=('opb', 0, ('OP', s)))

def poll(word_sreg_code, sh, val, tag, va, vd):
    return word_sreg_code + [f"v_mov_b32 v{va}, s52", "s_mov_b32 s55, 0x40000",
            f"L_poll{tag}:",
            f"buffer_load_dword v{vd}, v{va}, {srd(SDBG)}, 0 offen sc1",
            "s_waitcnt vmcnt(0)",
            f"v_readfirstlane_b32 s52, v{vd}", "s_nop 3",
            f"s_lshr_b32 s52, s52, {sh}", "s_and_b32 s52, s52, 0xff",
            f"s_cmp_ge_u32 s52, {val}", f"s_cbranch_scc1 L_pollend{tag}",
            "s_sleep 8", "s_sub_u32 s55, s55, 1", "s_cmp_lg_u32 s55, 0", f"s_cbranch_scc1 L_poll{tag}",
            f"L_pollend{tag}:"]
CLW = [f"s_lshl_b32 s52, s{S_C}, 2"]
BRW = [f"s_lshr_b32 s52, s{S_C}, 4", "s_lshl_b32 s52, s52, 2", "s_add_u32 s52, s52, 128"]
def signal(word, val, va, vd):
    return word + [f"v_mov_b32 v{vd}, {val:#x}", f"v_mov_b32 v{va}, s52", "s_mov_b64 exec, 1",
            f"buffer_atomic_add v{vd}, v{va}, {srd(SDBG)}, 0 offen sc1", "s_mov_b64 exec, -1"]

OUNITS = [(g, sp) for g in (3, 4, 5, 0, 1, 2) for sp in range(4)]
def gen1_end():
    p = ["L_gen1end:"]; A = p.append
    for g in range(6): A(f"v_rcp_f32 v{V_RC1+g}, v{LREG(g)}")
    A("s_cmp_lg_u32 s4, 0"); A("s_cbranch_scc1 L_pollret0")
    A(W('vm', need_tag(lambda t: t[0] == 'flag')))
    A("v_readlane_b32 s52, v0, 0"); A("v_readlane_b32 s53, v0, 1"); A("s_nop 3")
    A("s_and_b32 s52, s52, 0xff"); A("s_cmp_lt_u32 s52, 8"); A("s_cbranch_scc1 L_polla0")
    A("s_cmp_lt_u32 s53, 128"); A("s_cbranch_scc1 L_polla0")
    A("L_pollret0:")
    A("s_barrier")
    A(f"s_add_u32 s{S_OS}, s{S_OS}, {16*24576 - (0x8000000 if OPT['nost0'] else 0)}")
    A("s_lshr_b32 s52, s37, 1"); A("s_mul_i32 s52, s52, 1310720")
    A("s_add_u32 s24, s24, s52"); A("s_addc_u32 s25, s25, 0"); A("s_mov_b32 s26, 1310720")
    if OPT['nowo']: A("s_mov_b32 s26, 0")
    A(f"v_lshlrev_b32 v{V_OSV}, 4, v1")
    A("s_mul_i32 s52, s6, 5120"); A(f"v_add_u32 v{V_AO[0]}, s52, v{V_OSV}")
    A("s_sub_u32 s52, 5120, s52"); A(f"v_add_u32 v{V_AO[1]}, s52, v{V_OSV}")
    A("s_mul_i32 s52, s5, 3072"); A(f"v_add_u32 v{V_BO[0]}, s52, v{V_OSV}")
    A("s_sub_u32 s52, 3072, s52"); A(f"v_add_u32 v{V_BO[1]}, s52, v{V_OSV}")
    A(f"s_mul_i32 s{S_OPA}, s4, 163840")
    A("s_and_b32 s52, s37, 1"); A("s_lshl_b32 s52, s52, 5"); A(f"s_lshl_b32 s{S_OPB}, s4, 2")
    A(f"s_add_u32 s{S_OPB}, s{S_OPB}, s52"); A(f"s_mul_i32 s{S_OPB}, s{S_OPB}, 24576")
    if OPT['noo']: A(f"s_add_u32 s{S_OPB}, s{S_OPB}, 0x8000000")
    def aset(): return [f"s_mov_b32 s53, s{S_OPA}", f"s_add_u32 s54, s{S_OPA}, 4096"]
    p += aset()
    loads = [ldA(0, nt) for nt in range(10)] + [ldB(0, g) for g in range(6)]
    p += loads
    later = [[f"s_add_u32 s{S_OPA}, s{S_OPA}, 10240"] + aset() + [ldA(1, 0)], [ldA(1, 1)],
             [f"s_add_u32 s{S_OPB}, s{S_OPB}, 6144", ldB(1, 0)]] + [[ldB(1, g)] for g in range(1, 6)]
    after345 = [[ldA(1, nt)] for nt in range(2, 10)] + [[f"s_add_u32 s{S_OPA}, s{S_OPA}, 10240"] + aset() + [ldA(2, 0)]] + [[ldA(2, nt)] for nt in range(1, 9)]
    for n, (g, sp) in enumerate(OUNITS):
        if n not in HELDN:
            pk = 80 + 4 * (n % 4)
            p += o_unit(g, sp, V_RC1+g, 64 + 8*(n & 1), pk, V_OSV, 1, pkmul=True) + o_store(g, sp, pk, V_OSV, 1, 56)
        else:
            p += o_unit(g, sp, V_RC1+g, 64 + 8*(n & 1), HELD[HELDN.index(n)], V_OSV, 1, pkmul=True)
        if n < 12:
            if later: p += later.pop(0)
        else:
            for _ in range(2):
                if after345: p += after345.pop(0)
    assert not later and not after345
    A(f"s_mov_b32 s{S_CNT}, 0")
    A(W('vm', need_tag(lambda t: t[2] == ('OP', 0))))
    p += stamp()
    return p

def op_step(s):
    w = Weave(); put = w.put
    for nt in range(10):
        for g in range(6):
            d = opacc(nt, g)
            w.mf.append(M(d, a(opA(s, nt),4), v(OPB[s%3]+4*g,4), "0" if s == 0 else d))
    put(0, ldA(s+2, 9))
    put(1, f"s_cmp_eq_u32 s{S_CNT}, 13", f"s_cselect_b32 s55, s76, 10240")
    put(3, f"s_cmp_eq_u32 s{S_CNT}, 29", "s_cselect_b32 s55, s77, s55")
    put(5, f"s_add_u32 s{S_OPA}, s{S_OPA}, s55", f"s_mov_b32 s53, s{S_OPA}")
    for nt in range(9): put(6*(nt+1), ldA(s+3, nt))
    put(7, f"s_add_u32 s54, s{S_OPA}, 4096")
    put(8, f"s_cmp_eq_u32 s{S_CNT}, 14", f"s_cselect_b32 s55, s78, 6144")
    put(10, f"s_cmp_eq_u32 s{S_CNT}, 30", "s_cselect_b32 s55, s77, s55")
    put(14, f"s_add_u32 s{S_OPB}, s{S_OPB}, s55")
    for g in range(6): put(15 + 6*g, ldB(s+2, g))
    if s >= 5 and (s - 5) % 3 == 1:
        put(13, I(f"buffer_load_dword v61, off, {srd(SDBG)}, s79 sc1", tag=('flag', 0, s)))
    put(57, f"s_add_u32 s{S_CNT}, s{S_CNT}, 1")
    put(59, W('vm', need_tag(lambda t: t[2] == ('OP', s+1))))
    return w

def op_first():
    w = Weave()
    for s in range(5): w.extend(op_step(s))
    items = []
    for k, n in enumerate(HELDN):
        items += o_store(*OUNITS[n], HELD[k], V_OSV, 1, 56)
    w.place(items, 2, None, mingap=19)
    pre = [f"s_mov_b32 s76, {(64-16+1)*10240}", "s_mov_b32 s77, 0x10000000", f"s_mov_b32 s78, {(12*4+1)*6144}", "s_mov_b32 s79, s77"]
    return pre + w.out()

def op_final():
    p = []; A = p.append
    p += stamp()
    A("v_lshlrev_b32 v8, 4, v1")
    A("s_mul_i32 s52, s4, 30720")
    A("v_add_u32 v9, s52, v8")
    A("s_xor_b32 s53, s4, 1"); A("s_mul_i32 s53, s53, 30720")
    A("v_add_u32 v10, s53, v8")
    A("s_waitcnt vmcnt(0)")
    A("s_nop 4")
    for k in range(30): A(I(f"ds_write_b128 v9, {a(4*k,4)} offset:{1024*k}", tag=('lds', 'RED', 1)))
    A("s_waitcnt lgkmcnt(0)"); A("s_barrier")
    p += stamp(True)
    T = 184
    def addback(tiles, addr, ver):
        q = []
        n = len(tiles); D = 12
        for k in range(min(D, n)): q.append(I(f"ds_read_b128 {v(T+4*k,4)}, v{addr} offset:{1024*k}", src=('RED', ver)))
        for k in range(n):
            q.append(W('lgkm', need_regs(v(T+4*(k%D),4))))
            for e in range(2): q.append(f"v_pk_add_f32 {v(tiles[k]+2*e,2)}, {v(tiles[k]+2*e,2)}, {v(T+4*(k%D)+2*e,2)}")
            if k + D < n: q.append(I(f"ds_read_b128 {v(T+4*(k%D),4)}, v{addr} offset:{1024*(k+D)}", src=('RED', ver)))
        return q
    give = [OPK+4*(nt*6+g) for nt in range(5) for g in range(3, 6)]
    keep = [OPK+4*(nt*6+g) for nt in range(5) for g in range(3)]
    p += addback([OPK+4*k for k in range(30)], 10, 1)
    p += stamp(True)
    A("s_barrier")
    A("s_xor_b32 s53, s4, 2"); A("s_mul_i32 s53, s53, 30720")
    A("v_add_u32 v10, s53, v8")
    for k, r in enumerate(give): A(I(f"ds_write_b128 v9, {v(r,4)} offset:{1024*k}", tag=('lds', 'RED', 2)))
    A("v_and_b32 v11, 15, v1")
    A("v_mul_u32_u24 v11, 2560, v11")
    A("v_lshrrev_b32 v12, 4, v1")
    A("v_lshl_add_u32 v11, v12, 3, v11")
    A(f"s_mul_i32 s52, s5, {48*2560}")
    A("s_mul_i32 s53, s6, 160")
    A("s_add_u32 s52, s52, s53")
    A("v_add_u32 v11, s52, v11")
    A("v_lshlrev_b32 v13, 3, v12"); A("v_sub_u32 v13, v11, v13")
    A("v_and_b32 v14, 1, v12"); A("v_lshl_add_u32 v13, v14, 5, v13")
    A("v_lshrrev_b32 v14, 1, v12"); A("v_lshl_add_u32 v13, v14, 4, v13")
    A("s_waitcnt lgkmcnt(0)"); A("s_barrier")
    p += stamp(True)
    p += addback(keep, 10, 2)
    p += stamp(True)
    for y in range(3):
        A(f"s_mov_b32 s53, {y*16*2560}")
        d = T + 12*y
        for x in range(5):
            r = OPK + 4*(x*6+y)
            e = d + 4*(x >> 1) + (x & 1) * 2 if x < 4 else d + 8
            A(f"v_cvt_pk_bf16_f32 v{e}, v{r}, v{r+1}")
            A(f"v_cvt_pk_bf16_f32 v{e+1}, v{r+2}, v{r+3}")
        A(f"buffer_store_dwordx2 {v(d+8,2)}, v11, {srd(SOUT)}, s53 offen offset:128")
        for pr in range(2):
            e = d + 4*pr
            A(f"v_permlane16_swap_b32 v{e}, v{e+2}")
            A(f"v_permlane16_swap_b32 v{e+1}, v{e+3}")
        for pr in range(2):
            A(f"buffer_store_dwordx4 {v(d+4*pr,4)}, v13, {srd(SOUT)}, s53 offen offset:{64*pr}")
    p += stamp()
    return p

def stamp_dump():
    if not OPT['stamps']: return []
    return ["s_load_dwordx2 s[56:57], s[0:1], 96", "s_memrealtime s[52:53]", "s_waitcnt lgkmcnt(0)",
         "s_sub_u32 s52, s52, s68", "s_mov_b32 m0, 63", "s_nop 0", "v_writelane_b32 v39, s52, m0",
         "s_add_u32 s56, s56, 0x4000000", "s_addc_u32 s57, s57, 0", "s_mov_b32 s58, 0x100000", "s_mov_b32 s59, 0x20000",
         "s_lshl_b32 s52, s2, 10", "s_lshl_b32 s53, s4, 8", "s_add_u32 s52, s52, s53", "v_lshlrev_b32 v8, 2, v1", "s_nop 4",
         "buffer_store_dword v39, v8, s[56:59], s52 offen"]

def build():
    P = Prog()
    for nm in ("prologue", "qfirst0", "qtail", "trans", "a0", "aloop", "atail", "gen0end", "qfirst1", "gen1end", "opfirst", "ophdr", "opbody", "opfinal"):
        P.place(nm)
    P.run("prologue", prologue())
    for gen in range(2):
        if gen == 0: P.run("qfirst0", q_pre(0) + q_first(0) + stamp(True))
        else: P.run("qfirst1", q_pre(1) + q_first(1) + stamp(True) + ["s_branch L_qtail"])
        w = Weave()
        for s in range(16, 20): w.extend(q_step(gen, s))
        P.run("qtail", ["L_qtail:"] + w.out())
        P.run("trans", transition(gen))
        P.run("a0", a_tile(gen, 0) + (stamp() if OPT.get('afine') else []))
        for ps in range(3):
            body = ["L_aloop:"]
            for k in range(4): body += a_tile(gen, 1+4*ps+k) + (stamp() if OPT.get('afine') else [])
            body += stamp(True) + [f"s_sub_u32 s{S_CNT}, s{S_CNT}, 1", f"s_cmp_lg_u32 s{S_CNT}, 0", "s_cbranch_scc1 L_aloop"]
            P.run("aloop", body)
        P.run("atail", a_tile(gen, 13) + (stamp() if OPT.get('afine') else []) + a_tile(gen, 14) + (stamp() if OPT.get('afine') else []) + a_tile(gen, 15) + a_drain(gen) + stamp() + ["s_cmp_eq_u32 s7, 1", "s_cbranch_scc1 L_gen1end"])
        if gen == 0: P.run("gen0end", gen0_end())
    P.run("gen1end", gen1_end())
    P.run("opfirst", op_first() + stamp(True))
    for ps in range(9):
        P.run("ophdr", ["L_oploop:", f"s_cmp_eq_u32 s{S_CNT}, 8", "s_cbranch_scc1 L_oppub", f"s_cmp_eq_u32 s{S_CNT}, 11", "s_cbranch_scc1 L_oparm",
                        f"s_cmp_eq_u32 s{S_CNT}, 14", "s_cbranch_scc1 L_oppoll", "L_opbody:"])
        if ps == 1: P.run("oppub_", [W('vm', need_tag(lambda t: t[0] == 'ost')), "s_barrier"])
        if ps == 3: P.run("oppoll_", ["v_readfirstlane_b32 s52, v61"])
        w = Weave()
        for k in range(3): w.extend(op_step(5+3*ps+k))
        P.run("opbody", w.out() + stamp(True) + [f"s_cmp_lg_u32 s{S_CNT}, 32", "s_cbranch_scc1 L_oploop"])
    P.run("opfinal", op_final() + stamp_dump() + ["L_end:", "s_endpgm"])
    return P

def finish(P):
    res = resolve_waits([P.trace])
    npub = min(63, res[("oppub_", 0)])
    P.order.remove("oppub_")
    P.add_static("oppub", ["L_oppub:", f"s_waitcnt vmcnt({npub})", "s_barrier", "s_cmp_eq_u32 s4, 0", "s_cbranch_scc0 L_opbody"]
                 + signal(CLW, 0x100, 62, 63) + ["s_branch L_opbody"])
    P.order.remove("oppoll_")
    P.add_static("oparm", ["L_oparm:", f"s_lshl_b32 s79, s{S_C}, 2", "s_lshl_b32 s52, s4, 28", "s_add_u32 s79, s79, s52", "s_branch L_opbody"])
    P.add_static("oppoll", ["L_oppoll:", "s_mov_b32 s79, s77", "s_cmp_lg_u32 s4, 0", "s_cbranch_scc1 L_pollendb",
                 "v_readfirstlane_b32 s52, v61", "s_nop 3", "s_lshr_b32 s52, s52, 8", "s_and_b32 s52, s52, 0xff",
                 "s_cmp_ge_u32 s52, 8", "s_cbranch_scc1 L_pollendb"] + poll(CLW, 8, 8, "b", 62, 63) + ["s_barrier", "s_branch L_opbody"])
    P.add_static("sig0", ["L_sig0:"] + signal(CLW, 1, 62, 63) + ["s_nop 1"] + signal(BRW, 1, 60, 61) + ["s_branch L_nosig0"])
    P.add_static("polla", ["L_polla0:"] + poll(CLW, 0, 8, "a", 62, 63) + poll(BRW, 0, 128, "c", 62, 63) + ["s_branch L_pollret0"])
    P.add_static("slow", ["L_codeend:"] + slow_path())
    for name, ins in P.trace:
        for k, op in enumerate(ins):
            if op.kind == 'wait' and op.need is not None and res[(name, k)] == 999:
                op.kind = 'pseudo'; op.text = ''; op.states = 0
    errs = check(P.trace, res, private=lambda r: r == 'PK')
    errs += check([("slow", P.static["slow"])], res)
    return res, errs

HEADER = open('concat_heads__mha_block_cached__mha_block_cached__near_ridge.s.ref').read().split("; Override launch")[0]

def text(P, res):
    body = emit(P, res)
    return (HEADER + "; @launch grid=(256,1,1) block=(256,1,1) lds=163840\n"
            '.amdgcn_target "amdgcn-amd-amdhsa--gfx950"\n.text\n'
            f".globl {NAME}\n.p2align 8\n.type {NAME},@function\n{NAME}:\n" + body + "\n"
            '.section .rodata,"a"\n.p2align 6\n'
            f".amdhsa_kernel {NAME}\n  .amdhsa_next_free_vgpr 512\n  .amdhsa_next_free_sgpr 102\n  .amdhsa_accum_offset 256\n"
            "  .amdhsa_group_segment_fixed_size 0\n  .amdhsa_float_denorm_mode_32 3\n  .amdhsa_kernarg_size 104\n  .amdhsa_user_sgpr_count 2\n"
            "  .amdhsa_user_sgpr_kernarg_segment_ptr 1\n  .amdhsa_system_sgpr_workgroup_id_x 1\n.end_amdhsa_kernel\n")

if __name__ == "__main__":
    out = sys.argv[1] if len(sys.argv) > 1 else "k.s"
    for o in sys.argv[2:]:
        k, val = o.split('=', 1); OPT[k] = eval(val)
    P = build()
    res, errs = finish(P)
    import re as _re
    seen = set()
    for e in errs:
        key = _re.sub(r"\('[a-z0-9]+', \d+\)", "", e)
        if key not in seen:
            seen.add(key)
            if len(seen) <= 12: print("ERR", e)
    print(len(errs), "checker errors")
    open(out, "w").write(text(P, res))
```

```python
import re

REG_RE = re.compile(r'^(-|abs\()?([vas])(\d+)\)?$')
RNG_RE = re.compile(r'^(-)?([vas])\[(\d+):(\d+)\]$')

def regs_of(tok):
    tok = tok.strip()
    m = REG_RE.match(tok)
    if m: return [(m.group(2), int(m.group(3)))]
    m = RNG_RE.match(tok)
    if m: return [(m.group(2), i) for i in range(int(m.group(3)), int(m.group(4)) + 1)]
    if tok in ('m0', 'vcc', 'exec', 'scc'): return [(tok, 0)]
    if tok in ('vcc_lo', 'vcc_hi'): return [('vcc', 0)]
    return []

TRANS = ('v_exp_f32', 'v_rcp_f32', 'v_log_f32', 'v_rsq_f32', 'v_sqrt_f32')

class I:
    __slots__ = ('text', 'kind', 'rd', 'wr', 'tag', 'src', 'need', 'mn', 'states', 'srcC', 'AB', 'label')
    def __init__(self, text, tag=None, src=None):
        self.text = text; self.tag = tag; self.src = src; self.need = None; self.label = None
        self.states = 1; self.srcC = []; self.AB = []
        t = text.split(';')[0].strip()
        if t.endswith(':') or t.startswith('.') or t == '':
            self.kind = 'pseudo'; self.rd = []; self.wr = []; self.mn = ''; self.states = 0; return
        parts = t.split(None, 1)
        mn = parts[0]; self.mn = mn
        ops = []
        if len(parts) > 1:
            ops = [o.strip() for o in parts[1].split(',')]
            last = ops[-1].split()
            mods = last[1:] if last else []
            if last: ops[-1] = last[0]
        else:
            mods = []
        R = lambda k: regs_of(ops[k]) if k < len(ops) else []
        allr = lambda a: [x for k in range(a, len(ops)) for x in R(k)]
        rd = []; wr = []
        if mn.startswith('v_mfma'):
            self.kind = 'mfma'; wr = R(0); self.AB = R(1) + R(2); self.srcC = R(3); rd = self.AB + self.srcC
        elif mn.startswith('ds_read'):
            self.kind = 'ds'; wr = R(0); rd = R(1)
        elif mn.startswith('ds_write'):
            self.kind = 'dsw'; rd = allr(0)
        elif mn.startswith('buffer_load') or mn.startswith('global_load'):
            if 'lds' in mods:
                self.kind = 'dma'; rd = allr(0) + [('m0', 0)]
            else:
                self.kind = 'vld'; wr = R(0); rd = allr(1)
                if 'd16' in mn: rd += R(0)
        elif mn.startswith('buffer_store') or mn.startswith('global_store') or mn.startswith('buffer_atomic') or mn.startswith('global_atomic'):
            self.kind = 'vst'; rd = allr(0)
        elif mn.startswith('s_load'):
            self.kind = 'smem'; wr = R(0); rd = allr(1)
        elif mn in ('s_memtime', 's_memrealtime'):
            self.kind = 'smem'; wr = R(0)
        elif mn == 's_waitcnt':
            self.kind = 'wait'
        elif mn == 's_barrier':
            self.kind = 'barrier'
        elif mn == 's_nop':
            self.kind = 'nop'; self.states = int(ops[0], 0) + 1
        elif mn in ('s_branch', 's_endpgm', 's_sleep', 's_setprio') or mn.startswith('s_cbranch'):
            self.kind = 'ctl'
            if 'vcc' in mn: rd = [('vcc', 0)]
            if 'scc' in mn: rd = [('scc', 0)]
        elif mn.startswith('s_cmp'):
            self.kind = 'salu'; rd = allr(0); wr = [('scc', 0)]
        elif mn.startswith('s_'):
            self.kind = 'salu'; wr = R(0); rd = allr(1)
            if mn.startswith(('s_add', 's_sub', 's_and', 's_or', 's_xor', 's_lshl', 's_lshr')): wr = wr + [('scc', 0)]
            if mn.startswith(('s_cselect', 's_addc', 's_subb')): rd = rd + [('scc', 0)]
            if 'saveexec' in mn: wr = wr + [('exec', 0)]
        elif mn.startswith('v_'):
            self.kind = 'trans' if mn in TRANS else 'valu'
            wr = R(0); rd = allr(1)
            if mn.startswith('v_permlane') or mn.startswith('v_swap'):
                wr = R(0) + R(1); rd = R(0) + R(1)
            if mn.startswith(('v_fmac', 'v_writelane')): rd = rd + R(0)
            if mn.startswith('v_cndmask') and len(ops) == 3: rd = rd + [('vcc', 0)]
        else:
            raise ValueError('unknown instr ' + text)
        self.rd = rd; self.wr = wr

def W(cnt, need):
    i = I('s_waitcnt placeholder'); i.kind = 'wait'; i.need = (cnt, need); return i

def need_regs(*rs):
    s = set()
    for r in rs: s.update(regs_of(r))
    return lambda op: any(x in s for x in op.wr)
def need_tag(f):
    return lambda op: op.tag is not None and f(op.tag)
need_all = lambda op: True

class Prog:
    def __init__(self):
        self.order = []; self.static = {}; self.trace = []
    def place(self, name):
        if name not in self.order: self.order.append(name)
    def run(self, name, instrs):
        instrs = [x if isinstance(x, I) else I(x) for x in instrs]
        if name in self.static:
            st = self.static[name]
            assert len(st) == len(instrs), (name, len(st), len(instrs))
            for a, b in zip(st, instrs):
                assert a.text == b.text, (name, a.text, b.text)
        else:
            self.static[name] = instrs
            self.place(name)
        self.trace.append((name, instrs))
    def add_static(self, name, instrs):
        instrs = [x if isinstance(x, I) else I(x) for x in instrs]
        self.static[name] = instrs; self.place(name)

VM = ('dma', 'vld', 'vst'); LG = ('ds', 'dsw')

def parse_wait(text):
    vm = re.search(r'vmcnt\((\d+)\)', text); lg = re.search(r'lgkmcnt\((\d+)\)', text)
    return (int(vm.group(1)) if vm else None, int(lg.group(1)) if lg else None)

def resolve_waits(traces):
    res = {}
    for _pass in range(3):
        changed = False
        for trace in traces:
            q = {'vm': [], 'lgkm': []}
            for name, ins in trace:
                for k, op in enumerate(ins):
                    if op.kind in VM: q['vm'].append(op)
                    elif op.kind in LG: q['lgkm'].append(op)
                    elif op.kind == 'smem': q['lgkm'].append(op)
                    elif op.kind == 'wait':
                        if op.need is not None:
                            c, pred = op.need
                            last = -1
                            for j, o in enumerate(q[c]):
                                if pred(o): last = j
                            n = len(q[c]) - 1 - last
                            mx = 63 if c == 'vm' else 15
                            n = 999 if last < 0 else min(n, mx)
                            key = (name, k)
                            if key not in res or n < res[key]:
                                res[key] = n; changed = True
                            n = res[key]
                            if len(q[c]) > n: q[c] = q[c][len(q[c]) - n:] if n else []
                        else:
                            vm, lg = parse_wait(op.text)
                            if vm is not None and len(q['vm']) > vm: q['vm'] = q['vm'][len(q['vm']) - vm:] if vm else []
                            if lg is not None and len(q['lgkm']) > lg: q['lgkm'] = q['lgkm'][len(q['lgkm']) - lg:] if lg else []
        if not changed: break
    return res

def wait_text(op, n):
    c = op.need[0]
    return f"s_waitcnt vmcnt({n})" if c == 'vm' else f"s_waitcnt lgkmcnt({n})"

def check(trace, res, private=lambda region: False, verbose=True):
    errs = []
    q = {'vm': [], 'lgkm': []}
    pend = {}
    t = 0; n = 0; last_mfma = -100
    lastw = {}
    lastC = {}
    laststore = {}
    nbar = 0
    dma_done = {}
    rd_state = {}
    cur_ver = {}
    RG = lambda r: r if isinstance(r, tuple) else (r,)
    def retire(c, keep):
        while len(q[c]) > keep:
            o = q[c].pop(0)
            for r in o.wr:
                if pend.get(r) is o: del pend[r]
            if o.kind in ('dma', 'dsw') and o.tag and o.tag[0] == 'lds':
                for rg in RG(o.tag[1]):
                    dd = dma_done[(rg, o.tag[2])]; dd[1] += 1; dd[2] = nbar
            if o.kind == 'ds' and o.src:
                for rg in RG(o.src[0]):
                    dd = rd_state[(rg, o.src[1])]; dd[0] -= 1; dd[1] = nbar
    for name, ins in trace:
        for k, op in enumerate(ins):
            if op.kind == 'pseudo': continue
            where = f"{name}[{k}] {op.text}"
            if op.kind == 'mfma':
                t = max(t, last_mfma + 16)
            for r in op.rd + op.wr:
                if r in pend and not (op.kind in ('vld',) and 'd16' in op.mn):
                    errs.append(f"use of pending load reg {r}: {where} (load: {pend[r].text})")
            isv = op.kind in ('valu', 'trans')
            if ('scc', 0) in op.rd and ('scc', 0) in lastw:
                wmn = lastw[('scc', 0)][3].mn
                ok = wmn.startswith('s_cmp') if not op.mn.startswith(('s_addc', 's_subb')) else wmn in ('s_add_u32', 's_sub_u32')
                if op.mn.startswith('s_addc') and lastw[('scc', 0)][1] != n - 1: ok = False
                if not ok: errs.append(f"SCC from {lastw[('scc',0)][3].text}: {where}")
            for r in set(op.rd):
                if r in lastw:
                    wk, wn, wt, wop = lastw[r]
                    gap = n - wn - 1
                    if wk == 'mfma':
                        if op.kind == 'mfma':
                            if r in op.AB and t - wt < 40: errs.append(f"mfma D->AB {r}: {where}")
                            if r in op.srcC and op.srcC != wop.wr and t - wt < 32: errs.append(f"mfma D->C overlap {r}: {where}")
                        elif t - wt < 40: errs.append(f"mfma D->read {r} dt={t-wt}: {where}")
                    elif wk in ('valu', 'trans'):
                        if op.kind == 'mfma' and gap < 2: errs.append(f"valu->mfma {r}: {where}")
                        if wk == 'trans' and op.kind == 'valu' and gap < 1: errs.append(f"trans->valu {r}: {where}")
                        if op.mn.startswith('v_permlane') and gap < 2: errs.append(f"valu->permlane {r}: {where}")
                        if op.mn.startswith(('v_readfirstlane', 'v_readlane')) and r[0] == 'v' and gap < 1: errs.append(f"valu->readlane {r}: {where}")
                        if r[0] in ('s', 'vcc'):
                            if op.kind in VM and gap < 5: errs.append(f"valu sgpr->vmem {r}: {where}")
                            if isv and gap < 2: errs.append(f"valu sgpr->valu {r}: {where}")
                            if op.kind in ('salu', 'ctl') and gap < 2: errs.append(f"valu sgpr->salu {r}: {where}")
                    elif wk == 'salu':
                        if r == ('m0', 0) and op.kind == 'dma' and gap < 1: errs.append(f"m0->dma: {where}")
            for r in set(op.wr):
                if r in lastw and lastw[r][0] == 'mfma' and op.kind != 'mfma' and t - lastw[r][2] < 40:
                    errs.append(f"mfma D->write (WAW) {r}: {where}")
                if isv and r in lastC and t - lastC[r] < 20: errs.append(f"mfma C read->valu write {r}: {where}")
                if r in laststore and n - laststore[r] - 1 < 2: errs.append(f"store data WAR {r}: {where}")
            if op.kind in ('dma', 'dsw') and op.tag and op.tag[0] == 'lds':
                for region in RG(op.tag[1]):
                    key = (region, op.tag[2])
                    dma_done.setdefault(key, [0, 0, -1])[0] += 1
                    for (rg, ver), st in rd_state.items():
                        if rg == region and ver != key[1]:
                            pv = private(ver) and private(key[1])
                            if st[0] > 0: errs.append(f"LDS WAR: write {key} while reads of {(rg,ver)} outstanding: {where}")
                            elif not pv and st[1] >= nbar: errs.append(f"LDS WAR: write {key} w/o barrier after reads of {(rg,ver)}: {where}")
                    for (rg, ver), dd in dma_done.items():
                        if rg == region and ver != key[1]:
                            pv = private(ver) and private(key[1])
                            if dd[0] != dd[1] and not pv: errs.append(f"LDS WAW: write {key} while writes of {(rg,ver)} outstanding: {where}")
                            elif not pv and dd[2] >= nbar: errs.append(f"LDS WAW: write {key} w/o barrier after writes {(rg,ver)}: {where}")
                    cur_ver[region] = key[1]
            if op.kind == 'ds' and op.src:
                for region in RG(op.src[0]):
                    key = (region, op.src[1])
                    dd = dma_done.get(key)
                    if dd is None: errs.append(f"LDS read of never-written {key}: {where}")
                    else:
                        if dd[0] != dd[1]: errs.append(f"LDS RAW: read {key} with {dd[0]-dd[1]} writes outstanding: {where}")
                        elif not private(key[1]) and dd[2] >= nbar: errs.append(f"LDS RAW: read {key} w/o barrier: {where}")
                        if cur_ver.get(region) != key[1]: errs.append(f"LDS read {key} but region holds {cur_ver.get(region)}: {where}")
                    st = rd_state.setdefault(key, [0, -1]); st[0] += 1
            if op.kind in VM:
                q['vm'].append(op)
                if len(q['vm']) > 63: retire('vm', 63)
            if op.kind in LG or op.kind == 'smem': q['lgkm'].append(op)
            if op.kind in ('vld', 'ds', 'smem'):
                for r in op.wr: pend[r] = op
            if op.kind == 'wait':
                if op.need is not None:
                    retire(op.need[0], res[(name, k)])
                else:
                    vm, lg = parse_wait(op.text)
                    if vm is not None: retire('vm', vm)
                    if lg is not None: retire('lgkm', lg)
            if op.kind == 'barrier': nbar += 1
            for r in op.wr: lastw[r] = (op.kind, n, t, op)
            if op.kind == 'mfma':
                for r in op.srcC: lastC[r] = t
                last_mfma = t
            if op.kind == 'vst' and ('x4' in op.mn or 'x3' in op.mn):
                for r in regs_of(op.text.split(None, 1)[1].split(',')[0]): laststore[r] = n
            n += op.states; t += 4 * op.states
    return errs

def emit(prog, res):
    out = []
    for name in prog.order:
        out.append(f"; ---- block {name}")
        for k, op in enumerate(prog.static[name]):
            if op.kind == 'wait' and op.need is not None:
                out.append("    " + wait_text(op, res[(name, k)]))
            elif op.kind == 'pseudo':
                if op.text: out.append(op.text)
            else:
                out.append("    " + op.text)
    return "\n".join(out)

def weave(mfmas, fill):
    out = []
    for g, m in enumerate(mfmas):
        out.append(m)
        out.extend(fill.get(g, []))
    assert all(0 <= g < len(mfmas) for g in fill), sorted(fill)
    return out
```

```python
import sys, math, struct
from dsl import *

NAME = "concat_heads__mha_block_cached__mha_block_cached__near_ridge_kernel"
OPT = dict(stamps=False, fine=False, noq=False, nowo=False, noo=False, nokv=False, pf=True, codepf=True, pf1=False, pf0=2, rot=True, xtouch=True, kvspread=True, kvwin=0, opgap=19, xtstep=0, xtgap=24, outf='', t0step1=13, nwstep=6, touchfirst=False, s1early=False, q0f='', q0tf='', t0step=9, kvt=False, kvtf=' nt', nopack=False, q1steps=16, ostf=' sc1', nost0=False, noekv=False, q1span=11.5, thr=0x4e800000)

def v(b, n=1): return f"v{b}" if n == 1 else f"v[{b}:{b+n-1}]"
def a(b, n=1): return f"a{b}" if n == 1 else f"a[{b}:{b+n-1}]"
def M(d, A, B, C): return I(f"v_mfma_f32_16x16x32_bf16 {d}, {A}, {B}, {C}")

V_XO = [2, 3, 4]; V_WQO = [5, 6, 7, 38]
V_KV = [8, 9]
V_KA = [10, 14]; V_VA = [18, 26]
V_ONES = 34
V_NEGM = 40
V_QXA = 40; V_QWA = 41
V_PFW = 45; V_PFX = 46
ACC = 64
KF = 64; VF = [96, 128]; SB = [160, 168]; PB = [176, 180]
TMPA = 184; TMPB = 248
def LREG(g): return 208 + 4 * g if g < 4 else 240 + 4 * (g - 4)
def QF(g, ks):
    if g < 4: return a(192 + 16 * g + 4 * ks, 4)
    return v((192 if g == 4 else 224) + 4 * ks, 4)
def OACC(i, g): return (g * 8 + i) * 4
XB = [192, 216]; WA = 240

SX, SWQ, SKV, SO, SWP, SOUT, SDBG = 8, 12, 16, 20, 24, 28, 32
S_C, S_J = 36, 37
S_XS, S_WS, S_KS = 38, 39, 40
S_MX, S_MW, S_MK = 41, 42, 43
S_CNT, S_ME = 44, 45
S_OS = 48
S_OPA, S_OPB = 49, 50
SWO = 60
S_KP, S_VP = 72, 74
def srd(b): return f"s[{b}:{b+3}]"
SLOT = [0, 32768, 65536, 98304]; XSLOT = 131072
WPOFF = 0x3000000
NT = " nt"

def stamp(fine=False):
    if not OPT['stamps'] or (fine and not OPT['fine']): return []
    return [("s_memrealtime" if OPT.get('rt') else "s_memtime") + " s[58:59]", "s_waitcnt lgkmcnt(0)", "s_mov_b32 s59, m0", "s_mov_b32 m0, s69", "s_nop 0",
            "v_writelane_b32 v39, s58, m0", "s_mov_b32 m0, s59", "s_add_u32 s69, s69, 1"]

def dma(voff, sr, soff, off, region, ver, flags=""):
    if sr in (SX, SWQ) and ver[1] == 0: flags = OPT['q0f']
    return I(f"buffer_load_dwordx4 {v(voff)}, {srd(sr)}, s{soff} offen offset:{off}{flags} lds", tag=('lds', region, ver))
def touch(voff, sr, soff, fl=""):
    if sr in (SX, SWQ) and voff != 50: fl = OPT['q0tf']
    i = I(f"buffer_load_dword v0, {v(voff)}, {srd(sr)}, s{soff} offen{fl}"); i.wr = []; return i

def kind(x): return (x if isinstance(x, I) else I(x)).kind

class Weave:
    def __init__(self): self.mf = []; self.F = {}
    def put(self, g, *ins): self.F.setdefault(g, []).extend(ins)
    def putf(self, g, *ins): self.F.setdefault(g, [])[0:0] = list(ins)
    def extend(self, other):
        n = len(self.mf); self.mf += other.mf
        for g, l in other.F.items(): self.F.setdefault(n + g, []).extend(l)
        return n
    def cap(self, g):
        ks = [kind(x) for x in self.F.get(g, [])]
        if any(k in ('dma', 'vld', 'vst', 'barrier') for k in ks): return 0
        c = 2
        if any(k in ('ds', 'dsw') for k in ks): c -= 1; ns = sum(k in ('salu', 'wait') for k in ks)
        else: ns = max(0, sum(k in ('salu', 'wait') for k in ks) - 1)
        return c - ns - sum(k == 'valu' for k in ks) - 2 * sum(k == 'trans' for k in ks)
    def empty(self, g):
        return all(kind(x) in ('salu', 'wait') for x in self.F.get(g, [])) and len(self.F.get(g, [])) <= 1
    def place(self, items, start=0, end=None, mingap=0):
        g = start; end = len(self.mf) if end is None else end; lastv = -10**9
        for x in items:
            k = kind(x)
            if k == 'salu':
                self.put(g, x); continue
            if k in ('vst', 'vld', 'dma'):
                if self.F.get(g) and not self.empty(g): g += 1
                while g < end and (not self.empty(g) or g - lastv < mingap): g += 1
                assert g < end, "no room"
                self.put(g, x); lastv = g; g += 1
            else:
                while g < end and self.cap(g) < 1: g += 1
                assert g < end, "no room"
                self.put(g, x)
        return g
    def out(self): return weave(self.mf, self.F)

PKO = 184; PKT = 189; PKL = 191; PKD = [248, 252]
def pack_addr(part):
    if part == 0:
        p = [f"v_lshlrev_b32 v{PKL}, 4, v1", "v_mul_u32_u24 v248, 3277, v1"]
        for k in range(5):
            p += [f"v_add_u32 v249, {64*k*3277}, v248", "v_lshrrev_b32 v249, 16, v249", f"v_mad_u32_u24 v{PKO+k}, v249, s55, v{PKL}",
                  "v_lshlrev_b32 v249, 3, v249", "v_and_b32 v249, 32, v249", f"v_xor_b32 v{PKO+k}, v{PKO+k}, v249"]
        p.append(f"v_add_u32 v{PKO+4}, 4096, v{PKO+4}")
        return p
    return ["v_lshrrev_b32 v248, 4, v1", "v_bfe_u32 v249, v1, 2, 2", "v_lshl_add_u32 v249, v248, 2, v249", "v_mul_u32_u24 v249, 320, v249",
          "v_bfe_u32 v250, v1, 1, 1", "v_lshl_add_u32 v249, v250, 4, v249", "v_and_b32 v250, 1, v1", "v_lshl_add_u32 v249, v250, 3, v249",
          "v_add_u32 v249, s51, v249", "v_and_b32 v248, 1, v248", f"v_lshl_add_u32 v{PKT}, v248, 5, v249", "v_xor_b32 v248, 1, v248",
          f"v_lshl_add_u32 v{PKT+1}, v248, 5, v249"]

def prologue():
    p = []
    A = p.append
    A("s_cmp_ge_u32 s2, 256")
    A("s_cbranch_scc1 L_end")
    A("v_lshrrev_b32 v2, 6, v0")
    A("v_and_b32 v1, 63, v0")
    A("s_and_b32 s52, s2, 7")
    A("v_readfirstlane_b32 s4, v2")
    A("s_lshr_b32 s53, s2, 3")
    A("s_lshr_b32 s54, s53, 3")
    A("s_lshl_b32 s36, s52, 2")
    A("s_add_u32 s36, s36, s54")
    A("s_and_b32 s37, s53, 7")
    A("s_lshr_b32 s55, s36, 4")
    A("s_and_b32 s56, s36, 15")
    A("s_lshr_b32 s5, s4, 1")
    A("s_and_b32 s6, s4, 1")
    A("s_mul_i32 s57, s55, 40")
    A("s_add_u32 s58, s0, s57")
    A("s_addc_u32 s59, s1, 0")
    A("s_load_dwordx2 s[8:9], s[58:59], 0")
    A("s_load_dwordx4 s[72:75], s[58:59], 8")
    A("s_load_dwordx2 s[12:13], s[58:59], 24")
    A("s_load_dwordx2 s[60:61], s[58:59], 32")
    A("s_load_dwordx2 s[28:29], s[0:1], 80")
    A("s_load_dwordx2 s[32:33], s[0:1], 88")
    A("s_load_dwordx2 s[20:21], s[0:1], 96")
    A("v_lshrrev_b32 v40, 4, v1")
    A("v_and_b32 v41, 15, v1")
    A("v_lshrrev_b32 v42, 2, v1")
    A("v_and_b32 v43, 3, v1")
    A("v_bfe_u32 v44, v1, 2, 2")
    A("v_lshrrev_b32 v46, 3, v1")
    A("v_and_b32 v45, 6, v46")
    A("v_and_b32 v47, 7, v1")
    A("v_xor_b32 v45, v45, v47")
    A("v_lshlrev_b32 v45, 4, v45")
    A("v_mul_u32_u24 v46, 1280, v46")
    A("s_mul_i32 s52, s4, 61440")
    A("v_add3_u32 v2, v45, v46, s52")
    A("v_add_u32 v3, 9216, v2")
    A("v_add_u32 v4, 18432, v2")
    A("v_lshlrev_b32 v45, 2, v40")
    A("v_xor_b32 v45, v45, v41")
    A("v_lshlrev_b32 v45, 4, v45")
    A("v_lshl_add_u32 v45, v40, 13, v45")
    A("s_lshl_b32 s52, s6, 17")
    A("v_add_u32 v5, s52, v45")
    A("v_add_u32 v6, 31744, v5")
    A("v_add_u32 v7, 63488, v5")
    A("v_add_u32 v38, 95232, v5")
    A("s_lshl_b32 s41, s5, 15")
    A("s_mul_i32 s42, s6, 6144")
    A("s_add_u32 s41, s41, s42")
    A("s_add_u32 s41, s41, 16384")
    A("s_lshl_b32 s42, s4, 12")
    A("s_and_b32 s84, s2, 3"); A("s_mul_i32 s84, s84, 5"); A("s_and_b32 s84, s84, 0xfe")
    if not OPT['rot']: A("s_mov_b32 s84, 0")
    A("s_lshl_b32 s85, s84, 6")
    A("s_lshl_b32 s84, s84, 18")
    A("s_lshl_b32 s43, s4, 13")
    A("s_mov_b32 s7, 0")
    if OPT['stamps']:
        A("s_memrealtime s[68:69]"); A("v_mov_b32 v39, 0")
    A("s_waitcnt lgkmcnt(0)")
    if OPT['stamps']: A("s_mov_b32 s69, 0")
    A("s_mul_i32 s52, s56, 245760")
    A("s_add_u32 s8, s8, s52")
    A("s_addc_u32 s9, s9, 0")
    A("s_mov_b32 s10, 245760")
    A("s_mov_b32 s11, 0x20000")
    A("s_lshl_b32 s52, s37, 1")
    A("s_add_u32 s52, s52, s5")
    A("s_lshl_b32 s53, s52, 8")
    A("s_add_u32 s12, s12, s53")
    A("s_addc_u32 s13, s13, 0")
    A("s_sub_u32 s14, 5242880, s53")
    A("s_mov_b32 s15, 0x20000")
    if OPT['noq']: A("s_mov_b32 s10, 0"); A("s_mov_b32 s14, 4096")
    if OPT.get('nox'): A("s_mov_b32 s10, 0")
    if OPT.get('nowq'): A("s_mov_b32 s14, 4096")
    p += stamp()
    if OPT['touchfirst']:
        p += q_addr_setup(pf_only=True)
        p += pf_ahead(2, OPT['pf0'])
    p += w_loads(0, 0) + x_loads(0, 0, 0, 6)
    if OPT['codepf']:
        A("s_getpc_b64 s[64:65]"); A("L_pc:")
        A("s_sub_u32 s64, s64, L_pc-" + NAME); A("s_subb_u32 s65, s65, 0")
        A("s_mov_b32 s66, L_codeend-" + NAME); A("s_mov_b32 s67, 0x20000")
        A("s_lshr_b32 s53, s2, 3"); A("s_lshl_b32 s53, s53, 2"); A("s_add_u32 s53, s53, s4"); A("s_mul_i32 s53, s53, 640")
        A("v_lshlrev_b32 v58, 7, v1"); A("v_bfrev_b32 v59, 1"); A("v_cmp_gt_u32 vcc, 5, v1"); A("s_nop 1")
        A("v_cndmask_b32 v58, v59, v58, vcc")
        A(touch(58, 64, 53))
    if not OPT['touchfirst']:
        p += q_addr_setup(pf_only=True)
        p += pf_ahead(2, OPT['pf0'])
    p += w_loads(0, 1)
    A("s_lshl_b32 s57, s56, 3")
    A("s_add_u32 s57, s57, s37")
    A("s_mul_i32 s54, s57, 40960")
    A("s_mul_i32 s53, s4, 320")
    A("s_add_u32 s54, s54, s53")
    A("s_add_u32 s60, s60, s54")
    A("s_addc_u32 s61, s61, 0")
    A(f"s_mov_b32 s62, {0 if OPT['nopack'] else 31*1280+320}")
    A("s_mov_b32 s63, 0x20000")
    A("s_lshl_b32 s53, s56, 5")
    A("s_add_u32 s53, s53, s52")
    A("s_lshl_b32 s53, s53, 17")
    A("s_add_u32 s72, s72, s53"); A("s_addc_u32 s73, s73, 0")
    A("s_add_u32 s74, s74, s53"); A("s_addc_u32 s75, s75, 0")
    A("s_cmp_eq_u32 s6, 0")
    A("s_cselect_b32 s16, s72, s74")
    A("s_cselect_b32 s17, s73, s75")
    A("s_mov_b32 s18, 131072")
    A("s_mov_b32 s19, 0x20000")
    if OPT['nokv']: A("s_mov_b32 s18, 0")
    A("s_mul_i32 s53, s55, 5242880")
    A(f"s_add_u32 s53, s53, {WPOFF:#x}")
    A("s_add_u32 s24, s20, s53"); A("s_addc_u32 s25, s21, 0")
    A("s_mov_b32 s26, %d" % (0 if OPT['nopack'] else 5242880))
    A("s_mov_b32 s27, 0x20000")
    A("s_mul_i32 s51, s4, 10240")
    A("s_add_u32 s51, s51, 98304")
    A("s_mul_i32 s49, s4, 1310720")
    A("s_mul_i32 s53, s57, 10240")
    A("s_add_u32 s49, s49, s53")
    A("s_mul_i32 s53, s36, 1572864")
    A("s_add_u32 s20, s20, s53")
    A("s_addc_u32 s21, s21, 0")
    A("s_mov_b32 s22, 1572864")
    A("s_mov_b32 s23, 0x20000")
    A("s_lshl_b32 s53, s6, 5")
    A("s_add_u32 s53, s53, s52")
    A("s_mul_i32 s48, s53, 24576")
    A("s_lshr_b32 s53, s37, 1")
    A("s_mul_i32 s53, s53, 320")
    A("s_and_b32 s54, s37, 1")
    A("s_mul_i32 s54, s54, 96")
    A("s_mul_i32 s57, s56, 192")
    A("s_add_u32 s54, s54, s57")
    A("s_mul_i32 s54, s54, 2560")
    A("s_mul_i32 s57, s55, 1280")
    A("s_add_u32 s54, s54, s57")
    A("s_add_u32 s54, s54, s53")
    A("s_add_u32 s28, s28, s54")
    A("s_addc_u32 s29, s29, 0")
    A(f"s_mov_b32 s30, {95*2560+320}")
    A("s_mov_b32 s31, 0x20000")
    A("s_mov_b32 s34, 256")
    A("s_mov_b32 s35, 0x20000")
    cb = struct.unpack('<I', struct.pack('<f', math.log2(math.e) / math.sqrt(128.0)))[0]
    A(f"s_mov_b32 s46, {cb:#x}")
    A(f"s_mov_b32 s47, {cb:#x}")
    A("v_lshlrev_b32 v45, 1, v40")
    A("v_xor_b32 v45, v45, v41")
    A("v_lshlrev_b32 v45, 4, v45")
    A("v_lshl_add_u32 v8, v40, 8, v45")
    A("v_xor_b32 v9, 0x80, v8")
    A("v_and_b32 v45, 7, v41")
    A("v_lshlrev_b32 v45, 1, v45")
    A("v_xor_b32 v45, v45, v40")
    A("v_lshlrev_b32 v45, 4, v45")
    A("v_lshl_add_u32 v45, v41, 8, v45")
    A("s_lshl_b32 s52, s5, 14")
    A("v_add_u32 v10, s52, v45")
    for ks in range(1, 4): A(f"v_xor_b32 v{10+ks}, {64*ks}, v10")
    for ks in range(4): A(f"v_add_u32 v{14+ks}, 0x10000, v{10+ks}")
    A("v_lshl_add_u32 v45, v40, 2, v44")
    A("v_and_b32 v46, 7, v45")
    A("v_lshlrev_b32 v46, 1, v46")
    A("v_lshrrev_b32 v47, 1, v43")
    A("v_xor_b32 v46, v46, v47")
    A("v_lshlrev_b32 v46, 4, v46")
    A("v_lshl_add_u32 v46, v45, 8, v46")
    A("v_and_b32 v47, 1, v43")
    A("v_lshl_add_u32 v46, v47, 3, v46")
    A("s_add_u32 s52, s52, 8192")
    A("v_add_u32 v18, s52, v46")
    for i in range(1, 8): A(f"v_xor_b32 v{18+i}, {32*i}, v18")
    for i in range(8): A(f"v_add_u32 v{26+i}, 0x10000, v{18+i}")
    p += q_addr_setup(pf_only=False)
    return p

S_W0, S_X0 = 84, 85
def xreg(m): return (f"R{2*(m&1)}b", f"R{2*(m&1)+1}b")
def kvreg(tile): return "X" if tile == 0 else (f"R{(tile-1)&3}a", f"R{(tile-1)&3}b")
PKREG = ("R3a", "R3b", "X")
def x_piece(gen, m, p, sreg):
    return (f"s_add_u32 m0, s{S_MX}, {65536*(m&1) + (3072 if p >= 3 else 0)}", dma(V_XO[p%3], SX, sreg, 1024*(p%3), xreg(m), ('Q', gen, 2*m)))
def w_piece(gen, s, k, sreg):
    return (f"s_add_u32 m0, s{S_MW}, {SLOT[s&3]}", dma(V_WQO[k], SWQ, sreg, 1024*k, f"R{s&3}a", ('Q', gen, s)))
def w_loads(gen, s):
    p = [f"s_add_u32 s{S_WS}, s{S_W0}, {262144*s}", w_piece(gen, s, 0, S_WS)[0], "s_nop 0"]
    return p + [w_piece(gen, s, k, S_WS)[1] for k in range(4)]
def x_loads(gen, m, p0, p1):
    p = []
    for q in range(p0, p1):
        if q % 3 == 0: p += [f"s_add_u32 s{S_XS}, s{S_X0}, {128*m + (30720 if q else 0)}", x_piece(gen, m, q, S_XS)[0], "s_nop 0"]
        p.append(x_piece(gen, m, q, S_XS)[1])
    return p

def pf_ahead(s0, s1, rw=62, rx=63):
    if not OPT['pf']: return []
    p = ["s_mov_b32 s53, 0", touch(rx, SX, 53)] if (OPT['xtouch'] and OPT['xtstep'] < 0) else []
    for s in range(s0, s1):
        p += [f"s_add_u32 s53, s{S_W0}, {262144*s}", touch(rw, SWQ, 53)]
    return p

def qA(mt, gen, s):
    ks, t = mt >> 1, mt & 1
    d = WA + 4 * (mt & 3)
    return [I(f"ds_read_b64_tr_b16 {a(d+2*hh,2)}, {v(V_QWA+ks)} offset:{1024*hh+8*t}", src=(f"R{s&3}a", ('Q', gen, s))) for hh in range(2)]
def qB(g, gen, s):
    return I(f"ds_read_b128 {a(XB[s&1]+4*g,4)}, {v(V_QXA)} offset:{2048*g}", src=(xreg(s>>1), ('Q', gen, s & ~1)))

def q_addr_setup(pf_only=None):
    p = []; A = p.append
    if pf_only is not False:
        T0, T1 = (58, 59) if pf_only else (47, 48)
        D0, D1 = (62, 63) if pf_only else (V_PFW, V_PFX)
        A("s_and_b32 s53, s36, 3"); A("s_lshl_b32 s53, s53, 1"); A("s_add_u32 s53, s53, s6"); A("s_lshl_b32 s53, s53, 15")
        A(f"v_lshrrev_b32 v{T0}, 1, v1"); A(f"v_lshlrev_b32 v{T0}, 13, v{T0}"); A(f"v_and_b32 v{T1}, 1, v1"); A(f"v_lshl_add_u32 v{T0}, v{T1}, 7, v{T0}")
        A(f"v_add_u32 v{T0}, s53, v{T0}")
        A(f"v_bfrev_b32 v{T1}, 1")
        A("v_cmp_gt_u32 vcc, 8, v1"); A("s_nop 1")
        A(f"v_cndmask_b32 v{D0}, v{T1}, v{T0}, vcc")
        A("s_lshl_b32 s53, s37, 2"); A("s_add_u32 s53, s53, s4"); A("s_mul_i32 s53, s53, 7680")
        A(f"v_lshlrev_b32 v{T0}, 7, v1"); A(f"v_add_u32 v{T0}, s53, v{T0}")
        A("v_cmp_gt_u32 vcc, 60, v1"); A("s_nop 1")
        A(f"v_cndmask_b32 v{D1}, v{T1}, v{T0}, vcc")
        if pf_only: return p
    else:
        A(f"v_mov_b32 v{V_PFW}, v62"); A(f"v_mov_b32 v{V_PFX}, v63")
    A("v_lshlrev_b32 v57, 4, v1")
    A("v_lshlrev_b32 v47, 7, v1"); A("v_bfrev_b32 v48, 1"); A("v_cmp_gt_u32 vcc, 16, v1"); A("s_nop 1")
    A("v_cndmask_b32 v56, v48, v47, vcc")
    A("v_lshrrev_b32 v47, 4, v1")
    A("v_and_b32 v48, 6, v1")
    A("v_xor_b32 v48, v48, v47")
    A("v_lshlrev_b32 v48, 4, v48")
    A("v_and_b32 v49, 15, v1")
    A("v_lshl_add_u32 v48, v49, 7, v48")
    A("s_lshl_b32 s52, s6, 15")
    A("s_add_u32 s52, s52, 16384")
    A(f"v_add_u32 v{V_QXA}, s52, v48")
    A("v_bfe_u32 v48, v1, 2, 2")
    A("v_and_b32 v49, 3, v1")
    A("v_lshl_add_u32 v49, v48, 2, v49")
    A("v_lshlrev_b32 v49, 4, v49")
    A("v_lshl_add_u32 v48, v47, 3, v48")
    A("v_lshl_add_u32 v49, v48, 8, v49")
    A("s_lshl_b32 s52, s5, 13")
    A(f"v_add_u32 v{V_QWA}, s52, v49")
    for ks in range(1, 4): A(f"v_xor_b32 v{V_QWA+ks}, {64*ks}, v{V_QWA}")
    return p

def q_pre(gen):
    p = []; A = p.append
    A(f"s_mov_b32 s{S_KS}, 0")
    A(W('vm', need_tag(lambda t: t[2] == ('Q', gen, 0))))
    A("s_barrier")
    p += stamp()
    for mt in range(3): p += qA(mt, gen, 0)
    for g in range(6): A(qB(g, gen, 0))
    if gen == 0: p += w_loads(0, 2)
    p += x_loads(gen, 1, 0, 3)
    A(f"s_add_u32 s{S_WS}, s{S_W0}, {262144*3}")
    A(W('lgkm', need_regs(a(WA,4), a(XB[0],8))))
    return p

def kv_batch(gen, tile):
    reg = kvreg(tile); ver = ('KV', gen, tile); base = SLOT[(tile-1)&3]
    L = []
    for grp in range(2):
        L.append(f"s_add_u32 m0, s{S_MK}, {base+4096*grp}")
        for k in range(4): L.append(dma(V_KV[k&1], SKV, S_KS, 1024*k, reg, ver, NT))
        L.append(f"s_add_u32 s{S_KS}, s{S_KS}, 4096")
    return L

def q_step(gen, s):
    w = Weave(); put = w.put
    for mt in range(8):
        for g in range(6):
            d = v(ACC + 32*g + 4*mt, 4)
            w.mf.append(M(d, a(WA+4*(mt&3),4), a(XB[s&1]+4*g,4), "0" if s == 0 else d))
    last = s == 19
    for mt in range(3, 8):
        r = qA(mt, gen, s); put(6*(mt-3)+1, r[0]); put(6*(mt-3)+2, r[1])
    for mt in range(1, 8):
        put(6*mt-1, W('lgkm', need_regs(a(WA+4*(mt&3),4))))
    put(0, W('lgkm', need_regs(a(XB[s&1]+8,8))))
    w.put(3, W('lgkm', need_regs(a(XB[s&1]+16,8))))
    def mdma(gp, m0, ins, *after):
        put(gp-1, m0); put(gp, ins, *after)
    HG = (3, 9, 15, 21); TG = (35, 41, 47); XG = (6, 12, 18, 24)
    def bump(gp, reg, inc, lim):
        put(gp, f"s_add_u32 s{reg}, s{reg}, {inc}"); put(gp+1, f"s_cmp_eq_u32 s{reg}, {lim}", f"s_cselect_b32 s{reg}, 0, s{reg}")
    sp = s + 3
    if s % 2 == 0:
        m = s // 2 + 1
        if m <= 9:
            put(0, f"s_add_u32 s54, s{S_XS}, 30720")
            for k in range(3): mdma(HG[k], *x_piece(gen, m, 3+k, 54))
            bump(16, S_XS, 128, 1280)
        if sp <= 19:
            for k, gp in enumerate((HG[3],) + TG): mdma(gp, *w_piece(gen, sp, k, S_WS))
    else:
        if sp <= 19:
            bump(0 - 0, S_WS, 262144, 5242880)
            for k in range(4): mdma(HG[k], *w_piece(gen, sp, k, S_WS))
            bump(22, S_WS, 262144, 5242880)
        m = (s + 3) // 2
        if m <= 9:
            for k in range(3): mdma(TG[k], *x_piece(gen, m, k, S_XS))
    kvp = {17: [(1,0,35), (1,1,41), (1,2,47)], 18: [(1,3,3), (1,4,9), (1,5,15), (1,6,21), (1,7,27), (2,0,35), (2,1,41), (2,2,47)],
           19: [(2,3,3), (2,4,9), (2,5,15), (2,6,21), (2,7,27)]}.get(s, [])
    t0s = OPT['t0step'] if gen == 0 else OPT['t0step1']
    if s == t0s: kvp = [(0, k, gp) for k, gp in enumerate((6, 12, 18, 24, 27, 30))]
    if s == t0s + 1: kvp = [(0, 6, 6), (0, 7, 12)]
    if gen == 0 and OPT['xtouch'] and s == OPT['xtstep']:
        mdma(OPT['xtgap'], "s_mov_b32 s53, 0", touch(V_PFX, SX, 53))
    if gen == 0 and OPT['pf'] and s == OPT['nwstep']:
        w.place(["v_lshrrev_b32 v50, 1, v1", "v_and_b32 v51, 1, v1", "v_lshlrev_b32 v50, 13, v50", "v_lshl_add_u32 v50, v51, 7, v50",
                 "v_bfrev_b32 v51, 1", "v_cmp_gt_u32 vcc, 40, v1"], 4)
        put(12, "v_cndmask_b32 v50, v51, v50, vcc")
        put(4, f"s_and_b32 s55, s{S_C}, 15"); put(6, "s_lshl_b32 s55, s55, 1"); put(10, "s_add_u32 s55, s55, s6")
        put(12, f"s_mul_i32 s55, s55, {20*8192}"); put(18, "s_add_u32 s55, s55, 4096")
        put(24, touch(50, SWQ, 55))
    for (tile, pc, gp) in kvp:
        base = XSLOT if tile == 0 else SLOT[(tile-1)&3]
        ins = dma(V_KV[pc & 1], SKV, S_KS, 1024*(pc & 3), kvreg(tile), ('KV', gen, tile), NT)
        mdma(gp, f"s_add_u32 m0, s{S_MK}, {base + 4096*(pc>>2)}", ins, *([f"s_add_u32 s{S_KS}, s{S_KS}, 4096"] if pc & 3 == 3 else []))
    if not last:
        dl = SLOT[(s+1)&3] - SLOT[s&3]
        for k, gp in zip(range(1, 5), (28, 28, 29, 29) if s in (t0s, 18, 19) else (27, 27, 28, 29)):
            put(gp, f"v_add_u32 v{V_QXA+k}, {dl:#x}, v{V_QXA+k}" if dl > 0 else f"v_subrev_u32 v{V_QXA+k}, {-dl:#x}, v{V_QXA+k}")
        put(26, f"v_xor_b32 v{V_QXA}, {0x40 if s % 2 == 0 else 0x10040:#x}, v{V_QXA}")
    nxt = ('Q', gen, s+1) if not last else ('KV', gen, 0)
    w.putf(29, W('vm', need_tag(lambda t: t[2] == nxt)))
    put(31, W('lgkm', need_all), "s_barrier")
    if not last:
        r0 = qA(0, gen, s+1); r1 = qA(1, gen, s+1); r2 = qA(2, gen, s+1)
        w.putf(32, r0[0]); w.putf(33, r0[1]); w.putf(36, r1[0]); w.putf(37, r1[1]); w.putf(42, r2[0]); w.putf(43, r2[1])
        for g, gp in zip(range(6), (34, 38, 39, 40, 44, 45)): w.putf(gp, qB(g, gen, s+1))
        put(46, W('lgkm', need_regs(a(WA,4), a(XB[(s+1)&1],8))))
    drop = OPT.get('qdrop', ())
    if drop:
        for g in list(w.F): w.F[g] = [x for x in w.F[g] if kind(x) not in drop]
    return w
PF0 = None

V_RC0 = 58; V_OT = 47; V_OPK = 55 - 0
def o_unit(g, sp, rc, tb, pk, voff, gen, pkmul=False):
    q = []
    for k in range(8): q.append(f"v_accvgpr_read_b32 v{tb+k}, a{OACC(2*sp, g)+k}")
    if pkmul:
        e = rc & ~1; sel = rc & 1
        for k in range(4): q.append(f"v_pk_mul_f32 {v(tb+2*k,2)}, {v(tb+2*k,2)}, {v(e,2)} op_sel:[0,{sel}] op_sel_hi:[1,{sel}]")
    else:
        for k in range(8): q.append(f"v_mul_f32 v{tb+k}, v{rc}, v{tb+k}")
    for k in range(4): q.append(f"v_cvt_pk_bf16_f32 v{pk+k}, v{tb+2*k}, v{tb+2*k+1}")
    return q
def o_store(g, sp, pk, voff, gen, sreg):
    off = (sp * 6 + g) * 1024
    return [f"s_add_u32 s{sreg}, s{S_OS}, {off & ~4095}",
            I(f"buffer_store_dwordx4 {pk if isinstance(pk, str) else v(pk,4)}, v{voff}, {srd(SO)}, s{sreg} offen offset:{off & 4095}{OPT['ostf']}", tag=('ost', 0, gen))]

def q_first(gen):
    w = Weave()
    if gen == 0:
        for s in range(16): w.extend(q_step(0, s))
    else:
        for s in range(OPT['q1steps']): w.extend(q_step(1, s))
        gv = 0; gs = -1
        for g in range(6):
            for sp in range(4):
                u = o_unit(g, sp, V_RC0+g, 48, V_ONES, 57, 0)
                gv = max(gv, int((g*4+sp) * OPT['q1span'] * 2) - 8)
                gv = w.place(u[:16], gv)
                gv = max(gv, gs + 2)
                gv = w.place(u[16:], gv)
                gs = gv + 1
                while not w.empty(gs): gs += 1
                w.put(gs, *o_store(g, sp, V_ONES, 57, 0, 56))
        print("   O-epilogue woven up to gap", gs, "of", len(w.mf))
    for s in (4, 8, 12): w.put(48*s - 1, *stamp(True))
    if OPT.get('qfine'):
        for s in range(1, 17): w.put(48*s - 1, *stamp())
    return w.out()

def kread(f, gen, tile, aset, off):
    kt, ks = f >> 2, f & 3
    reg = kvreg(tile)
    return I(f"ds_read_b128 {v(KF+4*f,4)}, {v(aset+ks)} offset:{off+4096*kt}", src=(reg, ('KV', gen, tile)))
def vread(i, t, gen, tile, aset, off):
    reg = kvreg(tile)
    return I(f"ds_read_b64_tr_b16 {v(VF[tile&1]+4*i+2*t,2)}, {v(aset+i)} offset:{off+4096*t}", src=(reg, ('KV', gen, tile)))

def rowmax_bcast(n):
    return [f"v_mov_b32 v{n+1}, v{n}", "s_nop 1", f"v_permlane32_swap_b32 v{n}, v{n+1}", f"v_max_f32 v{n}, v{n}, v{n+1}",
            f"v_mov_b32 v{n+1}, v{n}", "s_nop 1", f"v_permlane16_swap_b32 v{n}, v{n+1}", f"v_max_f32 v{n}, v{n}, v{n+1}",
            f"v_mul_f32 v{n}, -1.0, v{n}", f"v_mov_b32 v{n+1}, v{n}", f"v_mov_b32 v{n+2}, v{n}", f"v_mov_b32 v{n+3}, v{n}"]
def est_max(g):
    n = V_NEGM + 4*g
    return [f"v_max3_f32 v{n}, v{n}, v{n+1}, v{n+2}", f"v_max_f32 v{n}, v{n}, v{n+3}"] + rowmax_bcast(n)

def transition(gen):
    p = []; A = p.append
    p += stamp()
    L3 = kv_batch(gen, 3)
    A("s_lshl_b32 s52, s7, 2"); A("s_sub_u32 s52, s52, s4"); A("s_cmp_eq_u32 s52, 4"); A("s_cbranch_scc1 L_sig0")
    A("L_nosig0:")
    A("s_add_u32 s12, s12, 4096"); A("s_addc_u32 s13, s13, 0")
    A("s_sub_u32 s14, s14, 4096")
    A("s_cmp_eq_u32 s7, 0"); A("s_cselect_b32 s14, s14, 0"); A("s_cselect_b32 s10, s10, 0")
    A(L3[0]); A("s_nop 1"); A(L3[1])
    def pack(g):
        b = ACC + 32*g; q = []
        for k in range(16): q.append(f"v_pk_mul_f32 {v(b+2*k,2)}, {v(b+2*k,2)}, s[46:47]")
        for k in range(16): q.append(f"v_cvt_pk_bf16_f32 v{b+k}, v{b+2*k}, v{b+2*k+1}")
        if g < 4:
            for k in range(16): q.append(f"v_accvgpr_write_b32 a{192+16*g+k}, v{b+k}")
        return q
    def est(g):
        d = v(V_NEGM+4*g, 4)
        return [M(d, v(KF+4*ks,4), QF(g, ks), "0" if ks == 0 else d) for ks in range(4)]
    p += pack(0)
    for ks in range(4): A(f"v_add_u32 v{52+ks}, 0x10000, v{V_KA[1]+ks}")
    for f in range(8): A(kread(f, gen, 0, 52, 0))
    A(L3[2])
    p += pack(1)
    for i in range(8): A(f"v_add_u32 v{56+i}, 0x10000, v{V_VA[1]+i}")
    for i in range(8):
        for t in range(2): A(vread(i, t, gen, 0, 56, 0))
    A(L3[3])
    A(W('lgkm', need_regs(v(KF, 16))))
    p += est(0); p += est(1)
    p += pack(2)
    A(L3[4]); A(L3[5]); A(L3[6])
    p += est_max(0); p += est_max(1)
    p += est(2)
    A(L3[7])
    p += pack(3)
    A(L3[8]); A("s_nop 0")
    p += est(3)
    p += pack(4)
    A(L3[9])
    p += est_max(2); p += est_max(3)
    p += est(4)
    p += pack(5)
    A(L3[10]); A(L3[11])
    p += est(5)
    p += est_max(4)
    A("s_movk_i32 s55, 960")
    p += pack_addr(0)
    for i in range(4): A(f"v_mov_b32 v{V_ONES+i}, 0x3f803f80")
    for k in range(4): A(f"v_mov_b32 v{LREG(5)+k}, 0")
    A("s_nop 1")
    p += est_max(5)
    A(W('lgkm', need_all))
    A(f"s_mov_b32 s{S_CNT}, 3")
    p += stamp()
    return p

DG15 = [(0, 12), (0, 16), (1, 3), (1, 8), (1, 16), (2, 6), (2, 16), (3, 8)]
EXPG = [7, 9, 11, 13, 15, 17, 19, 21]
CVTG = [10, 14, 18, 22]
def a_iter(gen, t):
    mf = []; base = {}
    groups = range(6) if t < 16 else [0]
    for g in groups:
        base[g] = len(mf)
        if t < 16:
            for kt in range(2):
                d = v(SB[g&1]+4*kt, 4)
                for ks in range(4):
                    mf.append(M(d, v(KF+4*(4*kt+ks),4), QF(g, ks), v(V_NEGM+4*g,4) if ks == 0 else d))
        pt, pg = (t, g-1) if g > 0 else (t-1, 5)
        if pt >= 0:
            z = (pt == 0 and pg < 5)
            for i in range(8):
                d = a(OACC(i, pg), 4)
                mf.append(M(d, v(VF[pt&1]+4*i,4), v(PB[pg&1],4), "0" if z else d))
            d = v(LREG(pg), 4)
            mf.append(M(d, v(V_ONES,4), v(PB[pg&1],4), "0" if z else d))
    return mf, base

def softmax_ops(g):
    e = [f"v_exp_f32 v{SB[g&1]+k}, v{SB[g&1]+k}" for k in range(8)]
    c = [f"v_cvt_pk_bf16_f32 v{PB[g&1]+k}, v{SB[g&1]+2*k}, v{SB[g&1]+2*k+1}" for k in range(4)]
    return e, c

def a_tile(gen, t):
    w = Weave(); w.mf, base = a_iter(gen, t)
    put, putf = w.put, w.putf
    short0 = (t == 0)
    def pos(g, rel):
        if rel >= 17: return pos(g+1, rel-17) if g < 5 else None
        return base[g] + rel
    if t > 0:
        e, c = softmax_ops(5)
        for k in range(8):
            if EXPG[k] >= 17: put(EXPG[k]-17, e[k])
        for k in range(4):
            if CVTG[k] >= 17: put(CVTG[k]-17, c[k])
    for g in range(6):
        e, c = softmax_ops(g)
        if g == 0 and short0:
            put(7, "s_nop 3", *e[:4])
            put(7, c[0], c[1])
            for k in range(4, 8): put(base[1] + (k-4), e[k])
            put(base[1]+4, c[2]); put(base[1]+5, c[3])
            continue
        for k in range(8):
            q = pos(g, EXPG[k])
            if q is not None: put(q, e[k])
        for k in range(4):
            q = pos(g, CVTG[k])
            if q is not None: put(q, c[k])
    if t > 0:
        for f in (2, 4, 6):
            putf(f-1, W('lgkm', need_regs(v(KF+4*f,8))))
    if t < 15:
        bg = 7 if short0 else 8
        putf(bg-1, W('vm', (need_all if t == 13 else need_tag(lambda x: x[2] == ('KV', gen, t+1)))))
        putf(bg, "s_barrier")
    else:
        putf(8, "s_barrier")
    if t < 15:
        sl = t & 3; ka = V_KA[sl >> 1]; va = V_VA[sl >> 1]; off = 32768 * (sl & 1)
        k = 0
        for g in range(1, 5):
            for rel in (1, 5, 10, 14):
                putf(base[g]+rel, vread(k >> 1, k & 1, gen, t+1, va, off)); k += 1
        for f, rel in enumerate((1, 3, 5, 6, 8, 10, 12, 14)):
            putf(base[5]+rel, kread(f, gen, t+1, ka, off))
        put(base[5]+16, W('lgkm', need_regs(v(KF,8))))
    if t == 15:
        putf(base[0]+2, f"s_lshl_b32 s52, s{S_C}, 2"); putf(base[0]+4, f"s_lshr_b32 s53, s{S_C}, 4")
        putf(base[0]+7, "s_lshl_b32 s53, s53, 2"); putf(base[1]+0, "s_add_u32 s53, s53, 128")
        put(base[1]+5, f"v_mov_b32 v0, s53"); put(base[1]+10, f"v_writelane_b32 v0, s52, 0")
        putf(base[1]+2, "s_lshl_b32 s54, s4, 28")
        fl = I(f"buffer_load_dword v0, v0, {srd(SDBG)}, s54 offen sc1", tag=('flag', 0, 0))
        if gen == 0: fl.wr = []
        putf(base[3]+8, fl)
    if t == 13:
        sl = [(0, 12), (0, 16), (1, 12), (2, 3), (2, 16), (3, 12), (3, 16), (4, 3), (4, 8), (4, 12)]
        for k, (g, rel) in enumerate(sl):
            h, x = divmod(k, 5)
            putf(base[g]+rel-1, f"s_add_u32 m0, s51, {5120*h + (4096 if x == 4 else 0)}")
            if x == 0: putf(base[g]+rel-3, f"s_mov_b32 s55, {16*1280*h}")
            putf(base[g]+rel, dma(PKO+x, SWO, 55, 1024*(x&3), PKREG, ('PK', gen), NT))
    if t == 15:
        putf(base[0]+9, W('vm', need_tag(lambda x: x[2] == ('PK', gen))))
        for k in range(3): putf(base[0]+(0, 11, 13)[k], f"s_add_u32 s{55+k}, s{S_OPA}, {4096*k}")
        dsg = [base[0]+10, base[0]+14] + sorted(base[g]+rel for g in range(1, 6) for rel in (1, 5, 10, 14))
        stg = [base[g]+rel for g in range(1, 6) for rel in (3, 6, 8, 12, 16) if not (g < 4 and (g, rel) in DG15)]
        for nt in range(10):
            d = PKD[nt & 1]
            for h in range(2):
                putf(dsg[2*nt+h], I(f"ds_read_b64_tr_b16 {v(d+2*h,2)}, v{PKT+(nt&1)} offset:{5120*h+64*(nt>>1)}", src=(PKREG, ('PK', gen))))
            sg = min(x for x in stg if x >= dsg[2*nt+1] + 5)
            st = [W('lgkm', need_regs(v(d,4))), I(f"buffer_store_dwordx4 {v(d,4)}, v{PKL}, {srd(SWP)}, s{55+nt//4} offen offset:{1024*(nt%4)} sc1", tag=('pst', 0, 0))]
            stg.remove(sg); putf(sg, *st)
            assert nt + 2 >= 10 or sg < dsg[2*(nt+2)], (nt, sg)
    dg = [(1, 3), (1, 8), (1, 16), (2, 6), (2, 12), (3, 3), (3, 8), (3, 16)]
    if t == 15: dg = DG15
    P_ = lambda k: base[dg[k][0]] + dg[k][1]
    if t <= 12:
        L = kv_batch(gen, t+4)
        kg = [(0, 12), (1, 8), (2, 3), (2, 16), (3, 12), (4, 6), (4, 16), (5, 16)] if OPT['kvspread'] else dg
        if short0 and OPT['kvspread']: kg[0] = (1, 6)
        K_ = lambda k: base[kg[k][0]] + kg[k][1]
        fc = [f"s_waitcnt vmcnt({OPT['kvwin']})"] if OPT['kvwin'] else []
        putf(K_(0)-3 if not short0 else K_(0)-1, L[0])
        for k in range(4): putf(K_(k), L[1+k]); putf(K_(k)-1, *fc)
        put(K_(3), L[5]); putf(K_(4)-3, L[6])
        for k in range(4): putf(K_(4+k), L[7+k]); putf(K_(4+k)-1, *fc)
        put(K_(7), L[11])
    else:
        s = t - 13
        putf(base[0]+9, f"s_add_u32 s{S_WS}, s{S_W0}, {262144*s}")
        for k in range(4):
            m0, ins = w_piece(gen+1, s, k, S_WS); putf(P_(k)-1, m0); putf(P_(k), ins)
        if t == 14:
            putf(base[0]+11, f"s_mov_b32 s{S_XS}, s{S_X0}"); putf(base[0]+13, f"s_add_u32 s54, s{S_X0}, 30720")
            for k, (g, rel) in enumerate(((2, 12), (3, 3), (3, 8), (3, 16), (4, 6), (4, 12))):
                m0, ins = x_piece(gen+1, 0, k, S_XS if k < 3 else 54); putf(base[g]+rel-1, m0); putf(base[g]+rel, ins)
    if t == 0:
        putf(0, "s_movk_i32 s55, 960")
        g0 = w.place([f"v_accvgpr_write_b32 a{OACC(0,5)+k}, 0" for k in range(32)], 1)
    if t == 12 - 12 + 13:
        pass
    if t == 14: w.place(pack_addr(1), 3)
    return w.out() + getattr(w, 'late', [])

def a_drain(gen):
    mf, base = a_iter(gen, 16)
    e, c = softmax_ops(5)
    p = [e[5], e[6], e[7], c[2], c[3], "s_nop 1"] + mf
    p += [f"s_mov_b32 s52, {OPT['thr']:#x}",
          f"v_add_f32 v{TMPA+1}, v{LREG(0)}, v{LREG(1)}", f"v_add_f32 v{TMPA+2}, v{LREG(2)}, v{LREG(3)}",
          f"v_add_f32 v{TMPA+1}, v{TMPA+1}, v{LREG(4)}", f"v_add_f32 v{TMPA+1}, v{TMPA+1}, v{TMPA+2}", "s_nop 5",
          f"v_add_f32 v{TMPA+1}, v{TMPA+1}, v{LREG(5)}",
          f"v_cmp_nge_f32 vcc, s52, v{TMPA+1}", "s_nop 4", "s_cbranch_vccnz L_slow", "L_slowret:"]
    return p

def slow_path():
    p = ["L_slow:"]; A = p.append
    SK, SV = 80, 64
    A("s_lshl_b32 s52, s7, 21")
    A("s_add_u32 s80, s72, s52"); A("s_addc_u32 s81, s73, 0"); A("s_mov_b32 s82, 131072"); A("s_mov_b32 s83, 0x20000")
    A("s_add_u32 s64, s74, s52"); A("s_addc_u32 s65, s75, 0"); A("s_mov_b32 s66, 131072"); A("s_mov_b32 s67, 0x20000")
    ka, va = TMPA, TMPA + 1
    A(f"v_and_b32 v{ka}, 15, v1"); A(f"v_lshrrev_b32 v{va}, 4, v1")
    A(f"v_lshlrev_b32 v{TMPA+2}, 1, v{ka}")
    A(f"v_lshlrev_b32 v{ka}, 8, v{ka}"); A(f"v_lshl_add_u32 v{ka}, v{va}, 4, v{ka}")
    A(f"v_lshl_add_u32 v{va}, v{va}, 10, v{TMPA+2}")
    for g in range(6): A(f"v_mov_b32 v{V_NEGM+4*g}, 0xff800000")
    def kloads():
        q = []
        for kt in range(2):
            q.append(f"s_add_u32 s53, s52, {4096*kt}")
            for ks in range(4): q.append(f"buffer_load_dwordx4 {v(KF+4*(4*kt+ks),4)}, v{ka}, {srd(SK)}, s53 offen offset:{64*ks}")
        return q
    def schain(g, c0):
        q = []
        for kt in range(2):
            d = v(SB[0]+4*kt, 4)
            for ks in range(4): q.append(M(d, v(KF+4*(4*kt+ks),4), QF(g, ks), c0 if ks == 0 else d))
        return q + ["s_nop 7", "s_nop 3"]
    A("s_mov_b32 s52, 0")
    A("L_slow1:")
    p += kloads(); A("s_waitcnt vmcnt(0)")
    for g in range(6):
        p += schain(g, "0")
        n = V_NEGM + 4*g; s0 = SB[0]
        for k in range(4): A(f"v_max3_f32 v{n}, v{n}, v{s0+2*k}, v{s0+2*k+1}")
    A("s_add_u32 s52, s52, 8192"); A("s_cmp_lg_u32 s52, 131072"); A("s_cbranch_scc1 L_slow1")
    for g in range(6): p += rowmax_bcast(V_NEGM + 4*g)
    for r in range(192): A(f"v_accvgpr_write_b32 a{r}, 0")
    for g in range(6):
        for k in range(4): A(f"v_mov_b32 v{LREG(g)+k}, 0")
    A("s_mov_b32 s52, 0")
    A("L_slow2:")
    p += kloads()
    for t in range(2):
        A(f"s_add_u32 s53, s52, {4096*t}")
        for i in range(8):
            for j in range(4):
                A(f"buffer_load_ushort v{VF[j&1]+4*i+2*t+(j>>1)}, v{va}, {srd(SV)}, s53 offen offset:{256*j+32*i}")
        A("s_waitcnt vmcnt(0)")
    for r in range(32): A(f"v_lshl_or_b32 v{VF[0]+r}, v{VF[1]+r}, 16, v{VF[0]+r}")
    for g in range(6):
        p += schain(g, v(V_NEGM+4*g, 4))
        for k in range(8): A(f"v_exp_f32 v{SB[0]+k}, v{SB[0]+k}")
        A("s_nop 0")
        for k in range(4): A(f"v_cvt_pk_bf16_f32 v{PB[0]+k}, v{SB[0]+2*k}, v{SB[0]+2*k+1}")
        A("s_nop 1")
        for i in range(8):
            d = a(OACC(i, g), 4); A(M(d, v(VF[0]+4*i,4), v(PB[0],4), d))
        d = v(LREG(g), 4); A(M(d, v(V_ONES,4), v(PB[0],4), d))
        A("s_nop 3")
    A("s_add_u32 s52, s52, 8192"); A("s_cmp_lg_u32 s52, 131072"); A("s_cbranch_scc1 L_slow2")
    A("s_nop 7"); A("s_nop 3")
    A("s_branch L_slowret")
    return p

def gen0_end():
    p = []; A = p.append
    for g in range(6): A(f"v_rcp_f32 v{V_RC0+g}, v{LREG(g)}")
    A("s_add_u32 s16, s16, 0x200000"); A("s_addc_u32 s17, s17, 0")
    A("s_mov_b32 s7, 1")
    A("s_mov_b32 s26, 0"); A("s_mov_b32 s62, 0")
    if OPT['nost0']: A(f"s_add_u32 s{S_OS}, s{S_OS}, 0x8000000")
    p += q_addr_setup()
    if OPT['pf1']: p += pf_ahead(3, 8, V_PFW, V_PFX)
    p += stamp()
    return p

OPK = 64
OPB = [184, 208, 232]
V_AO = [8, 9]; V_BO = [10, 11]; HELD = [12, 16, 20, 24, 28, 32, 40, 44, 48, 52, 56]; HELDN = [n for n in range(24) if n % 8 not in (0, 3, 6)]; V_OSV = 60; V_RC1 = 2
def opacc(nt, g): return v(OPK + 4*(nt*6+g), 4) if nt < 5 else a(4*((nt-5)*6+g), 4)
def opA(s, nt): return 120 + 4 * ((10*(s % 3) + nt + 18) % 30)
def ldA(s, nt):
    half, x = divmod(nt, 5)
    return I(f"buffer_load_dwordx4 {a(opA(s,nt),4)}, {v(V_AO[half])}, {srd(SWP)}, s{53 if x < 4 else 54} offen offset:{1024*(x&3)} sc1", tag=('opa', 0, ('OP', s)))
def ldB(s, g):
    return I(f"buffer_load_dwordx4 {v(OPB[s%3]+4*g,4)}, {v(V_BO[g//3])}, {srd(SO)}, s{S_OPB} offen offset:{1024*(g%3)} sc1", tag=('opb', 0, ('OP', s)))

def poll(word_sreg_code, sh, val, tag, va, vd):
    return word_sreg_code + [f"v_mov_b32 v{va}, s52", "s_mov_b32 s55, 0x40000",
            f"L_poll{tag}:",
            f"buffer_load_dword v{vd}, v{va}, {srd(SDBG)}, 0 offen sc1",
            "s_waitcnt vmcnt(0)",
            f"v_readfirstlane_b32 s52, v{vd}", "s_nop 3",
            f"s_lshr_b32 s52, s52, {sh}", "s_and_b32 s52, s52, 0xff",
            f"s_cmp_ge_u32 s52, {val}", f"s_cbranch_scc1 L_pollend{tag}",
            "s_sleep 8", "s_sub_u32 s55, s55, 1", "s_cmp_lg_u32 s55, 0", f"s_cbranch_scc1 L_poll{tag}",
            f"L_pollend{tag}:"]
CLW = [f"s_lshl_b32 s52, s{S_C}, 2"]
BRW = [f"s_lshr_b32 s52, s{S_C}, 4", "s_lshl_b32 s52, s52, 2", "s_add_u32 s52, s52, 128"]
def signal(word, val, va, vd):
    return word + [f"v_mov_b32 v{vd}, {val:#x}", f"v_mov_b32 v{va}, s52", "s_mov_b64 exec, 1",
            f"buffer_atomic_add v{vd}, v{va}, {srd(SDBG)}, 0 offen sc1", "s_mov_b64 exec, -1"]

OUNITS = [(g, sp) for g in (3, 4, 5, 0, 1, 2) for sp in range(4)]
def gen1_end():
    p = ["L_gen1end:"]; A = p.append
    for g in range(6): A(f"v_rcp_f32 v{V_RC1+g}, v{LREG(g)}")
    A("s_cmp_lg_u32 s4, 0"); A("s_cbranch_scc1 L_pollret0")
    A(W('vm', need_tag(lambda t: t[0] == 'flag')))
    A("v_readlane_b32 s52, v0, 0"); A("v_readlane_b32 s53, v0, 1"); A("s_nop 3")
    A("s_and_b32 s52, s52, 0xff"); A("s_cmp_lt_u32 s52, 8"); A("s_cbranch_scc1 L_polla0")
    A("s_cmp_lt_u32 s53, 128"); A("s_cbranch_scc1 L_polla0")
    A("L_pollret0:")
    A("s_barrier")
    A(f"s_add_u32 s{S_OS}, s{S_OS}, {16*24576 - (0x8000000 if OPT['nost0'] else 0)}")
    A("s_lshr_b32 s52, s37, 1"); A("s_mul_i32 s52, s52, 1310720")
    A("s_add_u32 s24, s24, s52"); A("s_addc_u32 s25, s25, 0"); A("s_mov_b32 s26, 1310720")
    if OPT['nowo']: A("s_mov_b32 s26, 0")
    A(f"v_lshlrev_b32 v{V_OSV}, 4, v1")
    A("s_mul_i32 s52, s6, 5120"); A(f"v_add_u32 v{V_AO[0]}, s52, v{V_OSV}")
    A("s_sub_u32 s52, 5120, s52"); A(f"v_add_u32 v{V_AO[1]}, s52, v{V_OSV}")
    A("s_mul_i32 s52, s5, 3072"); A(f"v_add_u32 v{V_BO[0]}, s52, v{V_OSV}")
    A("s_sub_u32 s52, 3072, s52"); A(f"v_add_u32 v{V_BO[1]}, s52, v{V_OSV}")
    A(f"s_mul_i32 s{S_OPA}, s4, 163840")
    A("s_and_b32 s52, s37, 1"); A("s_lshl_b32 s52, s52, 5"); A(f"s_lshl_b32 s{S_OPB}, s4, 2")
    A(f"s_add_u32 s{S_OPB}, s{S_OPB}, s52"); A(f"s_mul_i32 s{S_OPB}, s{S_OPB}, 24576")
    if OPT['noo']: A(f"s_add_u32 s{S_OPB}, s{S_OPB}, 0x8000000")
    def aset(): return [f"s_mov_b32 s53, s{S_OPA}", f"s_add_u32 s54, s{S_OPA}, 4096"]
    p += aset()
    loads = [ldA(0, nt) for nt in range(10)] + [ldB(0, g) for g in range(6)]
    p += loads
    later = [[f"s_add_u32 s{S_OPA}, s{S_OPA}, 10240"] + aset() + [ldA(1, 0)], [ldA(1, 1)],
             [f"s_add_u32 s{S_OPB}, s{S_OPB}, 6144", ldB(1, 0)]] + [[ldB(1, g)] for g in range(1, 6)]
    after345 = [[ldA(1, nt)] for nt in range(2, 10)] + [[f"s_add_u32 s{S_OPA}, s{S_OPA}, 10240"] + aset() + [ldA(2, 0)]] + [[ldA(2, nt)] for nt in range(1, 9)]
    for n, (g, sp) in enumerate(OUNITS):
        if n not in HELDN:
            pk = 80 + 4 * (n % 4)
            p += o_unit(g, sp, V_RC1+g, 64 + 8*(n & 1), pk, V_OSV, 1, pkmul=True) + o_store(g, sp, pk, V_OSV, 1, 56)
        else:
            hk = HELDN.index(n)
            if hk < 11: p += o_unit(g, sp, V_RC1+g, 64 + 8*(n & 1), HELD[hk], V_OSV, 1, pkmul=True)
            else:
                p += o_unit(g, sp, V_RC1+g, 64 + 8*(n & 1), 96, V_OSV, 1, pkmul=True)
                p += [f"v_accvgpr_write_b32 a{240+4*(hk-11)+k}, v{96+k}" for k in range(4)]
        if n < 12:
            if later: p += later.pop(0)
        else:
            for _ in range(2):
                if after345: p += after345.pop(0)
    assert not later and not after345
    A(f"s_mov_b32 s{S_CNT}, 0")
    A(W('vm', need_tag(lambda t: t[2] == ('OP', 0))))
    p += stamp()
    return p

def op_step(s):
    w = Weave(); put = w.put
    for nt in (range(10) if s < 31 else (5, 6, 7, 8, 9, 0, 1, 2, 3, 4)):
        for g in range(6):
            d = opacc(nt, g)
            w.mf.append(M(d, a(opA(s, nt),4), v(OPB[s%3]+4*g,4), "0" if s == 0 else d))
    if s >= 29:
        if s == 29:
            put(0, ldA(31, 9))
            put(14, f"s_add_u32 s{S_OPB}, s{S_OPB}, 6144")
            for g in range(6): put(15 + 6*g, ldB(31, g))
        if s == 30:
            put(2, "v_lshlrev_b32 v8, 4, v1", "s_mul_i32 s52, s4, 30720"); put(4, "v_add_u32 v9, s52, v8")
            put(6, "s_xor_b32 s53, s4, 1"); put(7, "s_mul_i32 s53, s53, 30720"); put(8, "v_add_u32 v10, s53, v8")
        if s < 31: put(59, W('vm', need_tag(lambda t: t[2] == ('OP', s+1))))
        else:
            for k in range(27): put(33 + k, I(f"ds_write_b128 v9, {a(4*k,4)} offset:{1024*k}", tag=('lds', 'RED', 1)))
        return w
    put(0, ldA(s+2, 9))
    put(1, f"s_cmp_eq_u32 s{S_CNT}, 13", f"s_cselect_b32 s55, s76, 10240")
    put(5, f"s_add_u32 s{S_OPA}, s{S_OPA}, s55", f"s_mov_b32 s53, s{S_OPA}")
    for nt in range(9): put(6*(nt+1), ldA(s+3, nt))
    put(7, f"s_add_u32 s54, s{S_OPA}, 4096")
    put(8, f"s_cmp_eq_u32 s{S_CNT}, 14", f"s_cselect_b32 s55, s78, 6144")
    put(14, f"s_add_u32 s{S_OPB}, s{S_OPB}, s55")
    for g in range(6): put(15 + 6*g, ldB(s+2, g))
    if s >= 5 and (s - 5) % 3 == 1:
        put(13, I(f"buffer_load_dword v61, off, {srd(SDBG)}, s79 sc1", tag=('flag', 0, s)))
    put(57, f"s_add_u32 s{S_CNT}, s{S_CNT}, 1")
    put(59, W('vm', need_tag(lambda t: t[2] == ('OP', s+1))))
    return w

def op_first():
    w = Weave()
    for s in range(5): w.extend(op_step(s))
    items = []
    for k, n in enumerate(HELDN):
        items += o_store(*OUNITS[n], HELD[k] if k < 11 else a(240+4*(k-11),4), V_OSV, 1, 56)
    w.place(items, 2, None, mingap=OPT['opgap'])
    pre = [f"s_mov_b32 s76, {(64-16+1)*10240}", "s_mov_b32 s77, 0x10000000", f"s_mov_b32 s78, {(12*4+1)*6144}", "s_mov_b32 s79, s77"]
    return pre + w.out()

def op_final():
    p = []; A = p.append
    p += stamp()
    for k in range(27, 30): A(I(f"ds_write_b128 v9, {a(4*k,4)} offset:{1024*k}", tag=('lds', 'RED', 1)))
    A("s_waitcnt lgkmcnt(0)"); A("s_barrier")
    p += stamp(True)
    T = 184
    def addback(tiles, addr, ver):
        q = []
        n = len(tiles); D = 12
        for k in range(min(D, n)): q.append(I(f"ds_read_b128 {v(T+4*k,4)}, v{addr} offset:{1024*k}", src=('RED', ver)))
        for k in range(n):
            q.append(W('lgkm', need_regs(v(T+4*(k%D),4))))
            for e in range(2): q.append(f"v_pk_add_f32 {v(tiles[k]+2*e,2)}, {v(tiles[k]+2*e,2)}, {v(T+4*(k%D)+2*e,2)}")
            if k + D < n: q.append(I(f"ds_read_b128 {v(T+4*(k%D),4)}, v{addr} offset:{1024*(k+D)}", src=('RED', ver)))
        return q
    give = [OPK+4*(nt*6+g) for nt in range(5) for g in range(3, 6)]
    keep = [OPK+4*(nt*6+g) for nt in range(5) for g in range(3)]
    p += addback([OPK+4*k for k in range(30)], 10, 1)
    p += stamp(True)
    A("s_barrier")
    A("s_xor_b32 s53, s4, 2"); A("s_mul_i32 s53, s53, 30720")
    A("v_add_u32 v10, s53, v8")
    for k, r in enumerate(give): A(I(f"ds_write_b128 v9, {v(r,4)} offset:{1024*k}", tag=('lds', 'RED', 2)))
    A("v_and_b32 v11, 15, v1")
    A("v_mul_u32_u24 v11, 2560, v11")
    A("v_lshrrev_b32 v12, 4, v1")
    A("v_lshl_add_u32 v11, v12, 3, v11")
    A(f"s_mul_i32 s52, s5, {48*2560}")
    A("s_mul_i32 s53, s6, 160")
    A("s_add_u32 s52, s52, s53")
    A("v_add_u32 v11, s52, v11")
    A("v_lshlrev_b32 v13, 3, v12"); A("v_sub_u32 v13, v11, v13")
    A("v_and_b32 v14, 1, v12"); A("v_lshl_add_u32 v13, v14, 5, v13")
    A("v_lshrrev_b32 v14, 1, v12"); A("v_lshl_add_u32 v13, v14, 4, v13")
    A("s_waitcnt lgkmcnt(0)"); A("s_barrier")
    p += stamp(True)
    p += addback(keep, 10, 2)
    p += stamp(True)
    for y in range(3):
        A(f"s_mov_b32 s53, {y*16*2560}")
        d = T + 12*y
        for x in range(5):
            r = OPK + 4*(x*6+y)
            e = d + 4*(x >> 1) + (x & 1) * 2 if x < 4 else d + 8
            A(f"v_cvt_pk_bf16_f32 v{e}, v{r}, v{r+1}")
            A(f"v_cvt_pk_bf16_f32 v{e+1}, v{r+2}, v{r+3}")
        A(f"buffer_store_dwordx2 {v(d+8,2)}, v11, {srd(SOUT)}, s53 offen offset:128{OPT['outf']}")
        for pr in range(2):
            e = d + 4*pr
            A(f"v_permlane16_swap_b32 v{e}, v{e+2}")
            A(f"v_permlane16_swap_b32 v{e+1}, v{e+3}")
        for pr in range(2):
            A(f"buffer_store_dwordx4 {v(d+4*pr,4)}, v13, {srd(SOUT)}, s53 offen offset:{64*pr}{OPT['outf']}")
    p += stamp()
    return p

def stamp_dump():
    if not OPT['stamps']: return []
    return ["s_load_dwordx2 s[56:57], s[0:1], 96", "s_memrealtime s[52:53]", "s_waitcnt lgkmcnt(0)",
         "s_sub_u32 s52, s52, s68", "s_mov_b32 m0, 63", "s_nop 0", "v_writelane_b32 v39, s52, m0",
         "s_add_u32 s56, s56, 0x4000000", "s_addc_u32 s57, s57, 0", "s_mov_b32 s58, 0x100000", "s_mov_b32 s59, 0x20000",
         "s_lshl_b32 s52, s2, 10", "s_lshl_b32 s53, s4, 8", "s_add_u32 s52, s52, s53", "v_lshlrev_b32 v8, 2, v1", "s_nop 4",
         "buffer_store_dword v39, v8, s[56:59], s52 offen"]

def build():
    P = Prog()
    for nm in ("prologue", "qfirst0", "qtail", "trans", "a0", "aloop", "atail", "gen0end", "qfirst1", "gen1end", "opfirst", "ophdr", "opbody", "opfinal"):
        P.place(nm)
    P.run("prologue", prologue())
    for gen in range(2):
        if gen == 0: P.run("qfirst0", q_pre(0) + q_first(0) + stamp(True))
        else: P.run("qfirst1", q_pre(1) + q_first(1) + stamp(True) + ["s_branch L_qtail"])
        w = Weave()
        for s in range(16, 20): w.extend(q_step(gen, s))
        P.run("qtail", ["L_qtail:"] + w.out())
        P.run("trans", transition(gen))
        P.run("a0", a_tile(gen, 0) + (stamp() if OPT.get('afine') else []))
        for ps in range(3):
            body = ["L_aloop:"]
            for k in range(4): body += a_tile(gen, 1+4*ps+k) + (stamp() if OPT.get('afine') else [])
            body += stamp(True) + [f"s_sub_u32 s{S_CNT}, s{S_CNT}, 1", f"s_cmp_lg_u32 s{S_CNT}, 0", "s_cbranch_scc1 L_aloop"]
            P.run("aloop", body)
        P.run("atail", a_tile(gen, 13) + (stamp() if OPT.get('afine') else []) + a_tile(gen, 14) + (stamp() if OPT.get('afine') else []) + a_tile(gen, 15) + a_drain(gen) + stamp() + ["s_cmp_eq_u32 s7, 1", "s_cbranch_scc1 L_gen1end"])
        if gen == 0: P.run("gen0end", gen0_end())
    P.run("gen1end", gen1_end())
    P.run("opfirst", op_first() + stamp(True))
    for ps in range(8):
        P.run("ophdr", ["L_oploop:", f"s_cmp_eq_u32 s{S_CNT}, 8", "s_cbranch_scc1 L_oppub", f"s_cmp_eq_u32 s{S_CNT}, 11", "s_cbranch_scc1 L_oparm",
                        f"s_cmp_eq_u32 s{S_CNT}, 14", "s_cbranch_scc1 L_oppoll", "L_opbody:"])
        if ps == 1: P.run("oppub_", [W('vm', need_tag(lambda t: t[0] == 'ost')), "s_barrier"])
        if ps == 3: P.run("oppoll_", ["v_readfirstlane_b32 s52, v61"])
        w = Weave()
        for k in range(3): w.extend(op_step(5+3*ps+k))
        P.run("opbody", w.out() + stamp(True) + [f"s_cmp_lg_u32 s{S_CNT}, 29", "s_cbranch_scc1 L_oploop"])
    w = Weave()
    for s in range(29, 32): w.extend(op_step(s))
    P.run("opfinal", w.out() + op_final() + stamp_dump() + ["L_end:", "s_endpgm"])
    return P

def finish(P):
    res = resolve_waits([P.trace])
    npub = min(63, res[("oppub_", 0)])
    P.order.remove("oppub_")
    P.add_static("oppub", ["L_oppub:", f"s_waitcnt vmcnt({npub})", "s_barrier", "s_cmp_eq_u32 s4, 0", "s_cbranch_scc0 L_opbody"]
                 + signal(CLW, 0x100, 62, 63) + ["s_branch L_opbody"])
    P.order.remove("oppoll_")
    P.add_static("oparm", ["L_oparm:", f"s_lshl_b32 s79, s{S_C}, 2", "s_lshl_b32 s52, s4, 28", "s_add_u32 s79, s79, s52", "s_branch L_opbody"])
    P.add_static("oppoll", ["L_oppoll:", "s_mov_b32 s79, s77", "s_cmp_lg_u32 s4, 0", "s_cbranch_scc1 L_pollendb",
                 "v_readfirstlane_b32 s52, v61", "s_nop 3", "s_lshr_b32 s52, s52, 8", "s_and_b32 s52, s52, 0xff",
                 "s_cmp_ge_u32 s52, 8", "s_cbranch_scc1 L_pollendb"] + poll(CLW, 8, 8, "b", 62, 63) + ["s_barrier", "s_branch L_opbody"])
    P.add_static("sig0", ["L_sig0:"] + signal(CLW, 1, 62, 63) + ["s_nop 1"] + signal(BRW, 1, 60, 61) + ["s_branch L_nosig0"])
    P.add_static("polla", ["L_polla0:"] + poll(CLW, 0, 8, "a", 62, 63) + poll(BRW, 0, 128, "c", 62, 63) + ["s_branch L_pollret0"])
    P.add_static("slow", ["L_codeend:"] + slow_path())
    for name, ins in P.trace:
        for k, op in enumerate(ins):
            if op.kind == 'wait' and op.need is not None and res[(name, k)] == 999:
                op.kind = 'pseudo'; op.text = ''; op.states = 0
    errs = check(P.trace, res, private=lambda ver: isinstance(ver, tuple) and ver[0] == 'PK')
    errs += check([("slow", P.static["slow"])], res)
    return res, errs

HEADER = open('concat_heads__mha_block_cached__mha_block_cached__near_ridge.s.ref').read().split("; Override launch")[0]

def text(P, res):
    body = emit(P, res)
    return (HEADER + "; @launch grid=(256,1,1) block=(256,1,1) lds=163840\n"
            '.amdgcn_target "amdgcn-amd-amdhsa--gfx950"\n.text\n'
            f".globl {NAME}\n.p2align 8\n.type {NAME},@function\n{NAME}:\n" + body + "\n"
            '.section .rodata,"a"\n.p2align 6\n'
            f".amdhsa_kernel {NAME}\n  .amdhsa_next_free_vgpr 512\n  .amdhsa_next_free_sgpr 102\n  .amdhsa_accum_offset 256\n"
            "  .amdhsa_group_segment_fixed_size 0\n  .amdhsa_float_denorm_mode_32 3\n  .amdhsa_kernarg_size 104\n  .amdhsa_user_sgpr_count 2\n"
            "  .amdhsa_user_sgpr_kernarg_segment_ptr 1\n  .amdhsa_system_sgpr_workgroup_id_x 1\n.end_amdhsa_kernel\n")

if __name__ == "__main__":
    out = sys.argv[1] if len(sys.argv) > 1 else "k.s"
    for o in sys.argv[2:]:
        k, val = o.split('=', 1); OPT[k] = eval(val)
    PF0 = {2: (9, 10, 11), 3: (12, 13, 14), 4: (15, 16, 17), 5: (18, 19)} if OPT.get('pfmode', 0) == 0 else {s: (s + OPT['pf0'] - 2,) for s in range(2, 22 - OPT['pf0'])}
    P = build()
    res, errs = finish(P)
    import re as _re
    seen = set()
    for e in errs:
        key = _re.sub(r"\('[a-z0-9]+', \d+\)", "", e)
        if key not in seen:
            seen.add(key)
            if len(seen) <= 12: print("ERR", e)
    print(len(errs), "checker errors")
    open(out, "w").write(text(P, res))
```

```python
import sys, math, struct
from dsl import *

NAME = "concat_heads__mha_block_cached__mha_block_cached__near_ridge_kernel"
OPT = dict(stamps=False, fine=False, noq=False, nowo=False, noo=False, nokv=False, pf=True, codepf=True, pf1=False, pf0=2, rot=True, xtouch=False, kg=((0,15),(1,6),(1,15),(2,6),(2,15),(3,15),(4,6),(4,15)), kvwin=5, t0mode=1, t0mode1=2, xmode=1, nwn=1, xdist=3, opgap=19, xtstep=0, xtgap=24, outf='', t0step1=12, nwstep=5, touchfirst=False, s1early=False, x0f='', w0f='', q0tf='', t0step=8, kvt=False, kvtf=' nt', nopack=False, q1steps=16, ostf=' sc1', nost0=False, noekv=False, q1span=11.5, thr=0x4e800000)

def v(b, n=1): return f"v{b}" if n == 1 else f"v[{b}:{b+n-1}]"
def a(b, n=1): return f"a{b}" if n == 1 else f"a[{b}:{b+n-1}]"
def M(d, A, B, C): return I(f"v_mfma_f32_16x16x32_bf16 {d}, {A}, {B}, {C}")

V_XO = [2, 3, 4]; V_WQO = [5, 6, 7, 38]
V_KV = [8, 9]
V_KA = [10, 14]; V_VA = [18, 26]
V_ONES = 34
V_NEGM = 40
V_QXA = 40; V_QWA = 41
V_PFW = 45; V_PFX = 46
ACC = 64
KF = 64; VF = [96, 128]; SB = [160, 168]; PB = [176, 180]
TMPA = 184; TMPB = 248
def LREG(g): return 208 + 4 * g if g < 4 else 240 + 4 * (g - 4)
def QF(g, ks):
    if g < 4: return a(192 + 16 * g + 4 * ks, 4)
    return v((192 if g == 4 else 224) + 4 * ks, 4)
def OACC(i, g): return (g * 8 + i) * 4
XB = [192, 216]; WA = 240

SX, SWQ, SKV, SO, SWP, SOUT, SDBG = 8, 12, 16, 20, 24, 28, 32
S_C, S_J = 36, 37
S_XS, S_WS, S_KS = 38, 39, 40
S_MX, S_MW, S_MK = 41, 42, 43
S_CNT, S_ME = 44, 45
S_OS = 48
S_OPA, S_OPB = 49, 50
SWO = 60
S_KP, S_VP = 72, 74
def srd(b): return f"s[{b}:{b+3}]"
SLOT = [0, 32768, 65536, 98304]; XSLOT = 131072
WPOFF = 0x3000000
NT = " nt"

def stamp(fine=False):
    if not OPT['stamps'] or (fine and not OPT['fine']): return []
    return [("s_memrealtime" if OPT.get('rt') else "s_memtime") + " s[58:59]", "s_waitcnt lgkmcnt(0)", "s_mov_b32 s59, m0", "s_mov_b32 m0, s69", "s_nop 0",
            "v_writelane_b32 v39, s58, m0", "s_mov_b32 m0, s59", "s_add_u32 s69, s69, 1"]

def dma(voff, sr, soff, off, region, ver, flags=""):
    if sr == SX and ver[1] == 0 and ver[2] < 18: flags = OPT['x0f']
    if sr == SWQ and ver[1] == 0 and ver[2] < 19: flags = OPT['w0f']
    return I(f"buffer_load_dwordx4 {v(voff)}, {srd(sr)}, s{soff} offen offset:{off}{flags} lds", tag=('lds', region, ver))
def touch(voff, sr, soff, fl=""):
    if sr in (SX, SWQ) and voff != 50: fl = OPT['q0tf']
    i = I(f"buffer_load_dword v0, {v(voff)}, {srd(sr)}, s{soff} offen{fl}"); i.wr = []; return i

def kind(x): return (x if isinstance(x, I) else I(x)).kind

class Weave:
    def __init__(self): self.mf = []; self.F = {}
    def put(self, g, *ins): self.F.setdefault(g, []).extend(ins)
    def putf(self, g, *ins): self.F.setdefault(g, [])[0:0] = list(ins)
    def extend(self, other):
        n = len(self.mf); self.mf += other.mf
        for g, l in other.F.items(): self.F.setdefault(n + g, []).extend(l)
        return n
    def cap(self, g):
        ks = [kind(x) for x in self.F.get(g, [])]
        if any(k in ('dma', 'vld', 'vst', 'barrier') for k in ks): return 0
        c = 2
        if any(k in ('ds', 'dsw') for k in ks): c -= 1; ns = sum(k in ('salu', 'wait') for k in ks)
        else: ns = max(0, sum(k in ('salu', 'wait') for k in ks) - 1)
        return c - ns - sum(k == 'valu' for k in ks) - 2 * sum(k == 'trans' for k in ks)
    def empty(self, g):
        return all(kind(x) in ('salu', 'wait') for x in self.F.get(g, [])) and len(self.F.get(g, [])) <= 1
    def place(self, items, start=0, end=None, mingap=0):
        g = start; end = len(self.mf) if end is None else end; lastv = -10**9
        for x in items:
            k = kind(x)
            if k == 'salu':
                self.put(g, x); continue
            if k in ('vst', 'vld', 'dma'):
                if self.F.get(g) and not self.empty(g): g += 1
                while g < end and (not self.empty(g) or g - lastv < mingap): g += 1
                assert g < end, "no room"
                self.put(g, x); lastv = g; g += 1
            else:
                while g < end and self.cap(g) < 1: g += 1
                assert g < end, "no room"
                self.put(g, x)
        return g
    def out(self): return weave(self.mf, self.F)

PKO = 184; PKT = 189; PKL = 191; PKD = [248, 252]
def pack_addr(part):
    if part == 0:
        p = [f"v_lshlrev_b32 v{PKL}, 4, v1", "v_mul_u32_u24 v248, 3277, v1"]
        for k in range(5):
            p += [f"v_add_u32 v249, {64*k*3277}, v248", "v_lshrrev_b32 v249, 16, v249", f"v_mad_u32_u24 v{PKO+k}, v249, s55, v{PKL}",
                  "v_lshlrev_b32 v249, 3, v249", "v_and_b32 v249, 32, v249", f"v_xor_b32 v{PKO+k}, v{PKO+k}, v249"]
        p.append(f"v_add_u32 v{PKO+4}, 4096, v{PKO+4}")
        return p
    return ["v_lshrrev_b32 v248, 4, v1", "v_bfe_u32 v249, v1, 2, 2", "v_lshl_add_u32 v249, v248, 2, v249", "v_mul_u32_u24 v249, 320, v249",
          "v_bfe_u32 v250, v1, 1, 1", "v_lshl_add_u32 v249, v250, 4, v249", "v_and_b32 v250, 1, v1", "v_lshl_add_u32 v249, v250, 3, v249",
          "v_add_u32 v249, s51, v249", "v_and_b32 v248, 1, v248", f"v_lshl_add_u32 v{PKT}, v248, 5, v249", "v_xor_b32 v248, 1, v248",
          f"v_lshl_add_u32 v{PKT+1}, v248, 5, v249"]

def prologue():
    p = []
    A = p.append
    A("s_cmp_ge_u32 s2, 256")
    A("s_cbranch_scc1 L_end")
    A("v_lshrrev_b32 v2, 6, v0")
    A("v_and_b32 v1, 63, v0")
    A("s_and_b32 s52, s2, 7")
    A("v_readfirstlane_b32 s4, v2")
    A("s_lshr_b32 s53, s2, 3")
    A("s_lshr_b32 s54, s53, 3")
    A("s_lshl_b32 s36, s52, 2")
    A("s_add_u32 s36, s36, s54")
    A("s_and_b32 s37, s53, 7")
    A("s_lshr_b32 s55, s36, 4")
    A("s_and_b32 s56, s36, 15")
    A("s_lshr_b32 s5, s4, 1")
    A("s_and_b32 s6, s4, 1")
    A("s_mul_i32 s57, s55, 40")
    A("s_add_u32 s58, s0, s57")
    A("s_addc_u32 s59, s1, 0")
    A("s_load_dwordx2 s[8:9], s[58:59], 0")
    A("s_load_dwordx4 s[72:75], s[58:59], 8")
    A("s_load_dwordx2 s[12:13], s[58:59], 24")
    A("s_load_dwordx2 s[60:61], s[58:59], 32")
    A("s_load_dwordx2 s[28:29], s[0:1], 80")
    A("s_load_dwordx2 s[32:33], s[0:1], 88")
    A("s_load_dwordx2 s[20:21], s[0:1], 96")
    A("v_lshrrev_b32 v40, 4, v1")
    A("v_and_b32 v41, 15, v1")
    A("v_lshrrev_b32 v42, 2, v1")
    A("v_and_b32 v43, 3, v1")
    A("v_bfe_u32 v44, v1, 2, 2")
    A("v_lshrrev_b32 v46, 3, v1")
    A("v_and_b32 v45, 6, v46")
    A("v_and_b32 v47, 7, v1")
    A("v_xor_b32 v45, v45, v47")
    A("v_lshlrev_b32 v45, 4, v45")
    A("v_mul_u32_u24 v46, 1280, v46")
    A("s_mul_i32 s52, s4, 61440")
    A("v_add3_u32 v2, v45, v46, s52")
    A("v_add_u32 v3, 9216, v2")
    A("v_add_u32 v4, 18432, v2")
    A("v_lshlrev_b32 v45, 2, v40")
    A("v_xor_b32 v45, v45, v41")
    A("v_lshlrev_b32 v45, 4, v45")
    A("v_lshl_add_u32 v45, v40, 13, v45")
    A("s_lshl_b32 s52, s6, 17")
    A("v_add_u32 v5, s52, v45")
    A("v_add_u32 v6, 31744, v5")
    A("v_add_u32 v7, 63488, v5")
    A("v_add_u32 v38, 95232, v5")
    A("s_lshl_b32 s41, s5, 15")
    A("s_mul_i32 s42, s6, 6144")
    A("s_add_u32 s41, s41, s42")
    A("s_add_u32 s41, s41, 16384")
    A("s_lshl_b32 s42, s4, 12")
    A("s_and_b32 s84, s2, 3"); A("s_mul_i32 s84, s84, 5"); A("s_and_b32 s84, s84, 0xfe")
    if not OPT['rot']: A("s_mov_b32 s84, 0")
    A("s_lshl_b32 s85, s84, 6")
    A("s_lshl_b32 s84, s84, 18")
    A("s_lshl_b32 s43, s4, 13")
    A("s_mov_b32 s7, 0")
    if OPT['stamps']:
        A("s_memrealtime s[68:69]"); A("v_mov_b32 v39, 0")
    A("s_waitcnt lgkmcnt(0)")
    if OPT['stamps']: A("s_mov_b32 s69, 0")
    A("s_mul_i32 s52, s56, 245760")
    A("s_add_u32 s8, s8, s52")
    A("s_addc_u32 s9, s9, 0")
    A("s_mov_b32 s10, 245760")
    A("s_mov_b32 s11, 0x20000")
    A("s_lshl_b32 s52, s37, 1")
    A("s_add_u32 s52, s52, s5")
    A("s_lshl_b32 s53, s52, 8")
    A("s_add_u32 s12, s12, s53")
    A("s_addc_u32 s13, s13, 0")
    A("s_sub_u32 s14, 5242880, s53")
    A("s_mov_b32 s15, 0x20000")
    if OPT['noq']: A("s_mov_b32 s10, 0"); A("s_mov_b32 s14, 4096")
    if OPT.get('nox'): A("s_mov_b32 s10, 0")
    if OPT.get('nowq'): A("s_mov_b32 s14, 4096")
    p += stamp()
    if OPT['touchfirst']:
        p += q_addr_setup(pf_only=True)
        p += pf_ahead(2, OPT['pf0'])
    p += w_loads(0, 0) + x_loads(0, 0, 0, 6)
    if OPT['codepf']:
        A("s_getpc_b64 s[64:65]"); A("L_pc:")
        A("s_sub_u32 s64, s64, L_pc-" + NAME); A("s_subb_u32 s65, s65, 0")
        A("s_mov_b32 s66, L_codeend-" + NAME); A("s_mov_b32 s67, 0x20000")
        A("s_lshr_b32 s53, s2, 3"); A("s_lshl_b32 s53, s53, 2"); A("s_add_u32 s53, s53, s4"); A("s_mul_i32 s53, s53, 640")
        A("v_lshlrev_b32 v58, 7, v1"); A("v_bfrev_b32 v59, 1"); A("v_cmp_gt_u32 vcc, 5, v1"); A("s_nop 1")
        A("v_cndmask_b32 v58, v59, v58, vcc")
        A(touch(58, 64, 53))
    if not OPT['touchfirst']:
        p += q_addr_setup(pf_only=True)
        p += pf_ahead(2, OPT['pf0'])
    p += w_loads(0, 1)
    A("s_lshl_b32 s57, s56, 3")
    A("s_add_u32 s57, s57, s37")
    A("s_mul_i32 s54, s57, 40960")
    A("s_mul_i32 s53, s4, 320")
    A("s_add_u32 s54, s54, s53")
    A("s_add_u32 s60, s60, s54")
    A("s_addc_u32 s61, s61, 0")
    A(f"s_mov_b32 s62, {0 if OPT['nopack'] else 31*1280+320}")
    A("s_mov_b32 s63, 0x20000")
    A("s_lshl_b32 s53, s56, 5")
    A("s_add_u32 s53, s53, s52")
    A("s_lshl_b32 s53, s53, 17")
    A("s_add_u32 s72, s72, s53"); A("s_addc_u32 s73, s73, 0")
    A("s_add_u32 s74, s74, s53"); A("s_addc_u32 s75, s75, 0")
    A("s_cmp_eq_u32 s6, 0")
    A("s_cselect_b32 s16, s72, s74")
    A("s_cselect_b32 s17, s73, s75")
    A("s_mov_b32 s18, 131072")
    A("s_mov_b32 s19, 0x20000")
    if OPT['nokv']: A("s_mov_b32 s18, 0")
    A("s_mul_i32 s53, s55, 5242880")
    A(f"s_add_u32 s53, s53, {WPOFF:#x}")
    A("s_add_u32 s24, s20, s53"); A("s_addc_u32 s25, s21, 0")
    A("s_mov_b32 s26, %d" % (0 if OPT['nopack'] else 5242880))
    A("s_mov_b32 s27, 0x20000")
    A("s_mul_i32 s51, s4, 10240")
    A("s_add_u32 s51, s51, 98304")
    A("s_mul_i32 s49, s4, 1310720")
    A("s_mul_i32 s53, s57, 10240")
    A("s_add_u32 s49, s49, s53")
    A("s_mul_i32 s53, s36, 1572864")
    A("s_add_u32 s20, s20, s53")
    A("s_addc_u32 s21, s21, 0")
    A("s_mov_b32 s22, 1572864")
    A("s_mov_b32 s23, 0x20000")
    A("s_lshl_b32 s53, s6, 5")
    A("s_add_u32 s53, s53, s52")
    A("s_mul_i32 s48, s53, 24576")
    A("s_lshr_b32 s53, s37, 1")
    A("s_mul_i32 s53, s53, 320")
    A("s_and_b32 s54, s37, 1")
    A("s_mul_i32 s54, s54, 96")
    A("s_mul_i32 s57, s56, 192")
    A("s_add_u32 s54, s54, s57")
    A("s_mul_i32 s54, s54, 2560")
    A("s_mul_i32 s57, s55, 1280")
    A("s_add_u32 s54, s54, s57")
    A("s_add_u32 s54, s54, s53")
    A("s_add_u32 s28, s28, s54")
    A("s_addc_u32 s29, s29, 0")
    A(f"s_mov_b32 s30, {95*2560+320}")
    A("s_mov_b32 s31, 0x20000")
    A("s_mov_b32 s34, 256")
    A("s_mov_b32 s35, 0x20000")
    cb = struct.unpack('<I', struct.pack('<f', math.log2(math.e) / math.sqrt(128.0)))[0]
    A(f"s_mov_b32 s46, {cb:#x}")
    A(f"s_mov_b32 s47, {cb:#x}")
    A("v_lshlrev_b32 v45, 1, v40")
    A("v_xor_b32 v45, v45, v41")
    A("v_lshlrev_b32 v45, 4, v45")
    A("v_lshl_add_u32 v8, v40, 8, v45")
    A("v_xor_b32 v9, 0x80, v8")
    A("v_and_b32 v45, 7, v41")
    A("v_lshlrev_b32 v45, 1, v45")
    A("v_xor_b32 v45, v45, v40")
    A("v_lshlrev_b32 v45, 4, v45")
    A("v_lshl_add_u32 v45, v41, 8, v45")
    A("s_lshl_b32 s52, s5, 14")
    A("v_add_u32 v10, s52, v45")
    for ks in range(1, 4): A(f"v_xor_b32 v{10+ks}, {64*ks}, v10")
    for ks in range(4): A(f"v_add_u32 v{14+ks}, 0x10000, v{10+ks}")
    A("v_lshl_add_u32 v45, v40, 2, v44")
    A("v_and_b32 v46, 7, v45")
    A("v_lshlrev_b32 v46, 1, v46")
    A("v_lshrrev_b32 v47, 1, v43")
    A("v_xor_b32 v46, v46, v47")
    A("v_lshlrev_b32 v46, 4, v46")
    A("v_lshl_add_u32 v46, v45, 8, v46")
    A("v_and_b32 v47, 1, v43")
    A("v_lshl_add_u32 v46, v47, 3, v46")
    A("s_add_u32 s52, s52, 8192")
    A("v_add_u32 v18, s52, v46")
    for i in range(1, 8): A(f"v_xor_b32 v{18+i}, {32*i}, v18")
    for i in range(8): A(f"v_add_u32 v{26+i}, 0x10000, v{18+i}")
    p += q_addr_setup(pf_only=False)
    return p

S_W0, S_X0 = 84, 85
def xreg(m): return (f"R{2*(m&1)}b", f"R{2*(m&1)+1}b")
def kvreg(tile): return "X" if tile == 0 else (f"R{(tile-1)&3}a", f"R{(tile-1)&3}b")
PKREG = ("R3a", "R3b", "X")
def x_piece(gen, m, p, sreg):
    return (f"s_add_u32 m0, s{S_MX}, {65536*(m&1) + (3072 if p >= 3 else 0)}", dma(V_XO[p%3], SX, sreg, 1024*(p%3), xreg(m), ('Q', gen, 2*m)))
def w_piece(gen, s, k, sreg):
    return (f"s_add_u32 m0, s{S_MW}, {SLOT[s&3]}", dma(V_WQO[k], SWQ, sreg, 1024*k, f"R{s&3}a", ('Q', gen, s)))
def w_loads(gen, s):
    p = [f"s_add_u32 s{S_WS}, s{S_W0}, {262144*s}", w_piece(gen, s, 0, S_WS)[0], "s_nop 0"]
    return p + [w_piece(gen, s, k, S_WS)[1] for k in range(4)]
def x_loads(gen, m, p0, p1):
    p = []
    for q in range(p0, p1):
        if q % 3 == 0: p += [f"s_add_u32 s{S_XS}, s{S_X0}, {128*m + (30720 if q else 0)}", x_piece(gen, m, q, S_XS)[0], "s_nop 0"]
        p.append(x_piece(gen, m, q, S_XS)[1])
    return p

def pf_ahead(s0, s1, rw=62, rx=63):
    if not OPT['pf']: return []
    p = ["s_mov_b32 s53, 0", touch(rx, SX, 53)] if (OPT['xtouch'] and OPT['xtstep'] < 0 and OPT['xmode'] == 0) else []
    if OPT['xtouch'] and OPT['xmode'] == 1:
        p.append(f"s_mov_b32 s86, s{S_X0}")
        for m in range(1, OPT['xdist']):
            p += ["s_add_u32 s86, s86, 128", "s_cmp_eq_u32 s86, 1280", "s_cselect_b32 s86, 0, s86", touch(rx, SX, 86)]
    for s in range(s0, s1):
        p += [f"s_add_u32 s53, s{S_W0}, {262144*s}", touch(rw, SWQ, 53)]
    return p

def qA(mt, gen, s):
    ks, t = mt >> 1, mt & 1
    d = WA + 4 * (mt & 3)
    return [I(f"ds_read_b64_tr_b16 {a(d+2*hh,2)}, {v(V_QWA+ks)} offset:{1024*hh+8*t}", src=(f"R{s&3}a", ('Q', gen, s))) for hh in range(2)]
def qB(g, gen, s):
    return I(f"ds_read_b128 {a(XB[s&1]+4*g,4)}, {v(V_QXA)} offset:{2048*g}", src=(xreg(s>>1), ('Q', gen, s & ~1)))

def q_addr_setup(pf_only=None):
    p = []; A = p.append
    if pf_only is not False:
        T0, T1 = (58, 59) if pf_only else (47, 48)
        D0, D1 = (62, 63) if pf_only else (V_PFW, V_PFX)
        A("s_and_b32 s53, s36, 3"); A("s_lshl_b32 s53, s53, 1"); A("s_add_u32 s53, s53, s6"); A("s_lshl_b32 s53, s53, 15")
        A(f"v_lshrrev_b32 v{T0}, 1, v1"); A(f"v_lshlrev_b32 v{T0}, 13, v{T0}"); A(f"v_and_b32 v{T1}, 1, v1"); A(f"v_lshl_add_u32 v{T0}, v{T1}, 7, v{T0}")
        A(f"v_add_u32 v{T0}, s53, v{T0}")
        A(f"v_bfrev_b32 v{T1}, 1")
        A("v_cmp_gt_u32 vcc, 8, v1"); A("s_nop 1")
        A(f"v_cndmask_b32 v{D0}, v{T1}, v{T0}, vcc")
        A("s_lshl_b32 s53, s37, 2"); A("s_add_u32 s53, s53, s4"); A("s_mul_i32 s53, s53, 7680")
        if OPT['xmode'] == 0:
            A(f"v_lshlrev_b32 v{T0}, 7, v1"); A(f"v_add_u32 v{T0}, s53, v{T0}")
            A("v_cmp_gt_u32 vcc, 60, v1"); A("s_nop 1")
        else:
            A(f"v_mul_u32_u24 v{T0}, 1280, v1"); A(f"v_add_u32 v{T0}, s53, v{T0}")
            A("v_cmp_gt_u32 vcc, 6, v1"); A("s_nop 1")
        A(f"v_cndmask_b32 v{D1}, v{T1}, v{T0}, vcc")
        if pf_only: return p
    else:
        A(f"v_mov_b32 v{V_PFW}, v62"); A(f"v_mov_b32 v{V_PFX}, v63")
    A("v_lshlrev_b32 v57, 4, v1")
    A("v_lshlrev_b32 v47, 7, v1"); A("v_bfrev_b32 v48, 1"); A("v_cmp_gt_u32 vcc, 16, v1"); A("s_nop 1")
    A("v_cndmask_b32 v56, v48, v47, vcc")
    A("v_lshrrev_b32 v47, 4, v1")
    A("v_and_b32 v48, 6, v1")
    A("v_xor_b32 v48, v48, v47")
    A("v_lshlrev_b32 v48, 4, v48")
    A("v_and_b32 v49, 15, v1")
    A("v_lshl_add_u32 v48, v49, 7, v48")
    A("s_lshl_b32 s52, s6, 15")
    A("s_add_u32 s52, s52, 16384")
    A(f"v_add_u32 v{V_QXA}, s52, v48")
    A("v_bfe_u32 v48, v1, 2, 2")
    A("v_and_b32 v49, 3, v1")
    A("v_lshl_add_u32 v49, v48, 2, v49")
    A("v_lshlrev_b32 v49, 4, v49")
    A("v_lshl_add_u32 v48, v47, 3, v48")
    A("v_lshl_add_u32 v49, v48, 8, v49")
    A("s_lshl_b32 s52, s5, 13")
    A(f"v_add_u32 v{V_QWA}, s52, v49")
    for ks in range(1, 4): A(f"v_xor_b32 v{V_QWA+ks}, {64*ks}, v{V_QWA}")
    return p

def q_pre(gen):
    p = []; A = p.append
    A(f"s_mov_b32 s{S_KS}, 0")
    A(W('vm', need_tag(lambda t: t[2] == ('Q', gen, 0))))
    A("s_barrier")
    p += stamp()
    for mt in range(3): p += qA(mt, gen, 0)
    for g in range(6): A(qB(g, gen, 0))
    if gen == 0: p += w_loads(0, 2)
    p += x_loads(gen, 1, 0, 3)
    A(f"s_add_u32 s{S_WS}, s{S_W0}, {262144*3}")
    A(W('lgkm', need_regs(a(WA,4), a(XB[0],8))))
    return p

def kv_batch(gen, tile):
    reg = kvreg(tile); ver = ('KV', gen, tile); base = SLOT[(tile-1)&3]
    L = []
    for grp in range(2):
        L.append(f"s_add_u32 m0, s{S_MK}, {base+4096*grp}")
        for k in range(4): L.append(dma(V_KV[k&1], SKV, S_KS, 1024*k, reg, ver, NT))
        L.append(f"s_add_u32 s{S_KS}, s{S_KS}, 4096")
    return L

def q_step(gen, s):
    w = Weave(); put = w.put
    for mt in range(8):
        for g in range(6):
            d = v(ACC + 32*g + 4*mt, 4)
            w.mf.append(M(d, a(WA+4*(mt&3),4), a(XB[s&1]+4*g,4), "0" if s == 0 else d))
    last = s == 19
    for mt in range(3, 8):
        r = qA(mt, gen, s); put(6*(mt-3)+1, r[0]); put(6*(mt-3)+2, r[1])
    for mt in range(1, 8):
        put(6*mt-1, W('lgkm', need_regs(a(WA+4*(mt&3),4))))
    put(0, W('lgkm', need_regs(a(XB[s&1]+8,8))))
    w.put(3, W('lgkm', need_regs(a(XB[s&1]+16,8))))
    def mdma(gp, m0, ins, *after):
        put(gp-1, m0); put(gp, ins, *after)
    HG = (3, 9, 15, 21); TG = (35, 41, 47); XG = (6, 12, 18, 24)
    def bump(gp, reg, inc, lim):
        put(gp, f"s_add_u32 s{reg}, s{reg}, {inc}"); put(gp+1, f"s_cmp_eq_u32 s{reg}, {lim}", f"s_cselect_b32 s{reg}, 0, s{reg}")
    sp = s + 3
    if s % 2 == 0:
        m = s // 2 + 1
        if m <= 9:
            put(0, f"s_add_u32 s54, s{S_XS}, 30720")
            for k in range(3): mdma(HG[k], *x_piece(gen, m, 3+k, 54))
            bump(16, S_XS, 128, 1280)
        if sp <= 19:
            for k, gp in enumerate((HG[3],) + TG): mdma(gp, *w_piece(gen, sp, k, S_WS))
    else:
        if sp <= 19:
            bump(0 - 0, S_WS, 262144, 5242880)
            for k in range(4): mdma(HG[k], *w_piece(gen, sp, k, S_WS))
            bump(22, S_WS, 262144, 5242880)
        m = (s + 3) // 2
        if m <= 9:
            for k in range(3): mdma(TG[k], *x_piece(gen, m, k, S_XS))
    kvp = {17: [(1,0,35), (1,1,41), (1,2,47)], 18: [(1,3,3), (1,4,9), (1,5,15), (1,6,21), (1,7,27), (2,0,35), (2,1,41), (2,2,47)],
           19: [(2,3,3), (2,4,9), (2,5,15), (2,6,21), (2,7,27)]}.get(s, [])
    t0s = OPT['t0step'] if gen == 0 else OPT['t0step1']
    md = OPT['t0mode'] if gen == 0 else OPT['t0mode1']
    if md == 0:
        if s == t0s: kvp = [(0, k, gp) for k, gp in enumerate((6, 12, 18, 24, 27, 30))]
        if s == t0s + 1: kvp = [(0, 6, 6), (0, 7, 12)]
    elif md == 1:
        if t0s <= s < t0s + 8: kvp = [(0, s - t0s, 24)]
    elif md == 2:
        if t0s <= s < t0s + 4: kvp = [(0, 2*(s - t0s), 24), (0, 2*(s-t0s)+1, 30)]
    if gen == 0 and OPT['xtouch'] and OPT['xmode'] == 1 and s % 2 == 0 and s // 2 + OPT['xdist'] <= 9:
        bump(26, 86, 128, 1280); put(30, touch(V_PFX, SX, 86))
    if gen == 0 and OPT['xtouch'] and OPT['xmode'] == 0 and s == OPT['xtstep']:
        mdma(OPT['xtgap'], "s_mov_b32 s53, 0", touch(V_PFX, SX, 53))
    if gen == 0 and OPT['pf'] and OPT['nwstep'] <= s < OPT['nwstep'] + 2 * OPT['nwn'] and (s - OPT['nwstep']) % 2 == 0:
        if s == OPT['nwstep']:
            w.place(["v_lshrrev_b32 v50, 1, v1", "v_and_b32 v51, 1, v1", "v_lshlrev_b32 v50, 13, v50", "v_lshl_add_u32 v50, v51, 7, v50",
                     "v_bfrev_b32 v51, 1", f"v_cmp_gt_u32 vcc, {40 // OPT['nwn']}, v1"], 4)
            put(12, "v_cndmask_b32 v50, v51, v50, vcc")
            put(4, f"s_and_b32 s55, s{S_C}, 15"); put(6, "s_lshl_b32 s55, s55, 1"); put(10, "s_add_u32 s55, s55, s6")
            put(12, f"s_mul_i32 s55, s55, {20*8192}"); put(18, "s_add_u32 s55, s55, 4096")
        put(30, touch(50, SWQ, 55), f"s_add_u32 s55, s55, {20 // OPT['nwn'] * 8192}")
    for (tile, pc, gp) in kvp:
        base = XSLOT if tile == 0 else SLOT[(tile-1)&3]
        ins = dma(V_KV[pc & 1], SKV, S_KS, 1024*(pc & 3), kvreg(tile), ('KV', gen, tile), NT)
        mdma(gp, f"s_add_u32 m0, s{S_MK}, {base + 4096*(pc>>2)}", ins, *([f"s_add_u32 s{S_KS}, s{S_KS}, 4096"] if pc & 3 == 3 else []))
    if not last:
        dl = SLOT[(s+1)&3] - SLOT[s&3]
        for k, gp in zip(range(1, 5), (28, 28, 29, 29) if (s in (18, 19) or (s == t0s and md == 0)) else (27, 27, 28, 29)):
            put(gp, f"v_add_u32 v{V_QXA+k}, {dl:#x}, v{V_QXA+k}" if dl > 0 else f"v_subrev_u32 v{V_QXA+k}, {-dl:#x}, v{V_QXA+k}")
        put(26, f"v_xor_b32 v{V_QXA}, {0x40 if s % 2 == 0 else 0x10040:#x}, v{V_QXA}")
    nxt = ('Q', gen, s+1) if not last else ('KV', gen, 0)
    w.putf(29, W('vm', need_tag(lambda t: t[2] == nxt)))
    put(31, W('lgkm', need_all), "s_barrier")
    if not last:
        r0 = qA(0, gen, s+1); r1 = qA(1, gen, s+1); r2 = qA(2, gen, s+1)
        w.putf(32, r0[0]); w.putf(33, r0[1]); w.putf(36, r1[0]); w.putf(37, r1[1]); w.putf(42, r2[0]); w.putf(43, r2[1])
        for g, gp in zip(range(6), (34, 38, 39, 40, 44, 45)): w.putf(gp, qB(g, gen, s+1))
        put(46, W('lgkm', need_regs(a(WA,4), a(XB[(s+1)&1],8))))
    drop = OPT.get('qdrop', ())
    if drop:
        for g in list(w.F): w.F[g] = [x for x in w.F[g] if kind(x) not in drop]
    return w
PF0 = None

V_RC0 = 58; V_OT = 47; V_OPK = 55 - 0
def o_unit(g, sp, rc, tb, pk, voff, gen, pkmul=False):
    q = []
    for k in range(8): q.append(f"v_accvgpr_read_b32 v{tb+k}, a{OACC(2*sp, g)+k}")
    if pkmul:
        e = rc & ~1; sel = rc & 1
        for k in range(4): q.append(f"v_pk_mul_f32 {v(tb+2*k,2)}, {v(tb+2*k,2)}, {v(e,2)} op_sel:[0,{sel}] op_sel_hi:[1,{sel}]")
    else:
        for k in range(8): q.append(f"v_mul_f32 v{tb+k}, v{rc}, v{tb+k}")
    for k in range(4): q.append(f"v_cvt_pk_bf16_f32 v{pk+k}, v{tb+2*k}, v{tb+2*k+1}")
    return q
def o_store(g, sp, pk, voff, gen, sreg):
    off = (sp * 6 + g) * 1024
    return [f"s_add_u32 s{sreg}, s{S_OS}, {off & ~4095}",
            I(f"buffer_store_dwordx4 {pk if isinstance(pk, str) else v(pk,4)}, v{voff}, {srd(SO)}, s{sreg} offen offset:{off & 4095}{OPT['ostf']}", tag=('ost', 0, gen))]

def q_first(gen):
    w = Weave()
    if gen == 0:
        for s in range(16): w.extend(q_step(0, s))
    else:
        for s in range(OPT['q1steps']): w.extend(q_step(1, s))
        gv = 0; gs = -1
        for g in range(6):
            for sp in range(4):
                u = o_unit(g, sp, V_RC0+g, 48, V_ONES, 57, 0)
                gv = max(gv, int((g*4+sp) * OPT['q1span'] * 2) - 8)
                gv = w.place(u[:16], gv)
                gv = max(gv, gs + 2)
                gv = w.place(u[16:], gv)
                gs = gv + 1
                while not w.empty(gs): gs += 1
                w.put(gs, *o_store(g, sp, V_ONES, 57, 0, 56))
        print("   O-epilogue woven up to gap", gs, "of", len(w.mf))
    for s in (4, 8, 12): w.put(48*s - 1, *stamp(True))
    if OPT.get('qfine'):
        for s in range(1, 17): w.put(48*s - 1, *stamp())
    return w.out()

def kread(f, gen, tile, aset, off):
    kt, ks = f >> 2, f & 3
    reg = kvreg(tile)
    return I(f"ds_read_b128 {v(KF+4*f,4)}, {v(aset+ks)} offset:{off+4096*kt}", src=(reg, ('KV', gen, tile)))
def vread(i, t, gen, tile, aset, off):
    reg = kvreg(tile)
    return I(f"ds_read_b64_tr_b16 {v(VF[tile&1]+4*i+2*t,2)}, {v(aset+i)} offset:{off+4096*t}", src=(reg, ('KV', gen, tile)))

def rowmax_bcast(n):
    return [f"v_mov_b32 v{n+1}, v{n}", "s_nop 1", f"v_permlane32_swap_b32 v{n}, v{n+1}", f"v_max_f32 v{n}, v{n}, v{n+1}",
            f"v_mov_b32 v{n+1}, v{n}", "s_nop 1", f"v_permlane16_swap_b32 v{n}, v{n+1}", f"v_max_f32 v{n}, v{n}, v{n+1}",
            f"v_mul_f32 v{n}, -1.0, v{n}", f"v_mov_b32 v{n+1}, v{n}", f"v_mov_b32 v{n+2}, v{n}", f"v_mov_b32 v{n+3}, v{n}"]
def est_max(g):
    n = V_NEGM + 4*g
    return [f"v_max3_f32 v{n}, v{n}, v{n+1}, v{n+2}", f"v_max_f32 v{n}, v{n}, v{n+3}"] + rowmax_bcast(n)

def transition(gen):
    p = []; A = p.append
    p += stamp()
    L3 = kv_batch(gen, 3)
    A("s_lshl_b32 s52, s7, 2"); A("s_sub_u32 s52, s52, s4"); A("s_cmp_eq_u32 s52, 4"); A("s_cbranch_scc1 L_sig0")
    A("L_nosig0:")
    A("s_add_u32 s12, s12, 4096"); A("s_addc_u32 s13, s13, 0")
    A("s_sub_u32 s14, s14, 4096")
    A("s_cmp_eq_u32 s7, 0"); A("s_cselect_b32 s14, s14, 0"); A("s_cselect_b32 s10, s10, 0")
    A(L3[0])
    def mul(g): return [f"v_pk_mul_f32 {v(ACC+32*g+2*k,2)}, {v(ACC+32*g+2*k,2)}, s[46:47]" for k in range(16)]
    def cvt(g):
        b = ACC + 32*g
        q = [f"v_cvt_pk_bf16_f32 v{b+k}, v{b+2*k}, v{b+2*k+1}" for k in range(16)]
        if g < 4: q += [f"v_accvgpr_write_b32 a{192+16*g+k}, v{b+k}" for k in range(16)]
        return q
    def est(g):
        d = v(V_NEGM+4*g, 4)
        return [M(d, v(KF+4*ks,4), QF(g, ks), "0" if ks == 0 else d) for ks in range(4)]
    def mix(*streams):
        ss = [[x for x in s_ if not (isinstance(x, str) and x.startswith("s_nop"))] for s_ in streams]; out = []
        while any(ss):
            for s_ in ss:
                if s_: out.append(s_.pop(0))
        return out
    def under(mf, fill):
        out = []; fill = list(fill)
        for m_ in mf:
            out.append(m_); out += fill[:2]; fill = fill[2:]
        return out + fill
    kad = [f"v_add_u32 v{52+ks}, 0x10000, v{V_KA[1]+ks}" for ks in range(4)]
    vad = [f"v_add_u32 v{56+i}, 0x10000, v{V_VA[1]+i}" for i in range(8)]
    p += kad + vad
    A(L3[1])
    p += mul(0) + cvt(0)
    kr = [kread(f, gen, 0, 52, 0) for f in range(8)]
    m1 = mul(1)
    for f in range(8): p += [kr[f]] + m1[2*f:2*f+2]
    A(L3[2])
    p += cvt(1)
    vr_ = [vread(i, t, gen, 0, 56, 0) for i in range(8) for t in range(2)]
    m25 = mul(2) + mul(3) + mul(4) + mul(5)
    for k in range(16): p += [vr_[k]] + m25[4*k:4*k+4]
    A(L3[3])
    A(W('lgkm', need_regs(v(KF, 16))))
    c2 = cvt(2); c3 = cvt(3); c4 = cvt(4); c5 = cvt(5)
    p += under(est(0) + est(1), c2)
    A(L3[4]); A(L3[5]); A(L3[6])
    p += under(est(2), c3)
    A(L3[7])
    p += under(est(3), c4 + mix(est_max(0), est_max(1), est_max(2)))
    A(L3[8])
    p += under(est(4), c5)
    A(L3[9])
    misc = [f"v_mov_b32 v{V_ONES+i}, 0x3f803f80" for i in range(4)] + [f"v_mov_b32 v{LREG(5)+k}, 0" for k in range(4)]
    p += under(est(5), misc)
    A(L3[10]); A(L3[11])
    p += mix(est_max(3), est_max(4))[:6]
    p += mix(est_max(5), est_max(3)[4:], est_max(4)[4:])
    A(W('lgkm', need_all))
    A(f"s_mov_b32 s{S_CNT}, 3")
    p += stamp()
    return p

DG15 = [(0, 12), (0, 16), (1, 3), (1, 8), (1, 16), (2, 6), (2, 16), (3, 8)]
EXPG = [7, 8, 10, 11, 17, 18, 20, 21]
CVTG = [9, 12, 19, 22]
DSG = (2, 5, 9, 12)
def a_iter(gen, t):
    mf = []; base = {}
    groups = range(6) if t < 16 else [0]
    for g in groups:
        base[g] = len(mf)
        if t < 16:
            for kt in range(2):
                d = v(SB[g&1]+4*kt, 4)
                for ks in range(4):
                    mf.append(M(d, v(KF+4*(4*kt+ks),4), QF(g, ks), v(V_NEGM+4*g,4) if ks == 0 else d))
        pt, pg = (t, g-1) if g > 0 else (t-1, 5)
        if pt >= 0:
            z = (pt == 0 and pg < 5)
            for i in range(8):
                d = a(OACC(i, pg), 4)
                mf.append(M(d, v(VF[pt&1]+4*i,4), v(PB[pg&1],4), "0" if z else d))
            d = v(LREG(pg), 4)
            mf.append(M(d, v(V_ONES,4), v(PB[pg&1],4), "0" if z else d))
    return mf, base

def softmax_ops(g):
    e = [f"v_exp_f32 v{SB[g&1]+k}, v{SB[g&1]+k}" for k in range(8)]
    c = [f"v_cvt_pk_bf16_f32 v{PB[g&1]+k}, v{SB[g&1]+2*k}, v{SB[g&1]+2*k+1}" for k in range(4)]
    return e, c

def a_tile(gen, t):
    w = Weave(); w.mf, base = a_iter(gen, t)
    put, putf = w.put, w.putf
    short0 = (t == 0)
    def pos(g, rel):
        if rel >= 17: return pos(g+1, rel-17) if g < 5 else None
        return base[g] + rel
    if t > 0:
        e, c = softmax_ops(5)
        for k in range(8):
            if EXPG[k] >= 17: put(EXPG[k]-17, e[k])
        for k in range(4):
            if CVTG[k] >= 17: put(CVTG[k]-17, c[k])
    for g in range(6):
        e, c = softmax_ops(g)
        if g == 0 and short0:
            put(7, "s_nop 3", *e[:4])
            put(7, c[0], c[1])
            for k in range(4, 8): put(base[1] + EXPG[k] - 17, e[k])
            put(base[1]+2, c[2]); put(base[1]+5, c[3])
            continue
        for k in range(8):
            q = pos(g, EXPG[k])
            if q is not None: put(q, e[k])
        for k in range(4):
            q = pos(g, CVTG[k])
            if q is not None: put(q, c[k])
    if t > 0:
        for f in (2, 4, 6):
            putf(f-1, W('lgkm', need_regs(v(KF+4*f,8))))
    if t < 15:
        bg = 7 if short0 else 13
        putf(bg-1, W('vm', (need_all if t == 13 else need_tag(lambda x: x[2] == ('KV', gen, t+1)))))
        putf(bg, "s_barrier")
    else:
        putf(13, "s_barrier")
    if t < 15:
        sl = t & 3; ka = V_KA[sl >> 1]; va = V_VA[sl >> 1]; off = 32768 * (sl & 1)
        k = 0
        for g in range(1, 5):
            for rel in DSG:
                putf(base[g]+rel, vread(k >> 1, k & 1, gen, t+1, va, off)); k += 1
        for f, rel in enumerate((2, 5, 6, 9, 12, 13, 14, 15)):
            putf(base[5]+rel, kread(f, gen, t+1, ka, off))
        put(base[5]+16, W('lgkm', need_regs(v(KF,8))))
    if t == 15:
        putf(base[0]+4, f"s_lshl_b32 s52, s{S_C}, 2"); putf(base[0]+6, f"s_lshr_b32 s53, s{S_C}, 4")
        putf(base[0]+7, "s_lshl_b32 s53, s53, 2"); putf(base[0]+11, "s_add_u32 s53, s53, 128")
        put(base[0]+16, f"v_mov_b32 v0, s53", f"v_writelane_b32 v0, s52, 0")
        putf(base[1]+3, "s_lshl_b32 s54, s4, 28")
        fl = I(f"buffer_load_dword v0, v0, {srd(SDBG)}, s54 offen sc1", tag=('flag', 0, 0))
        if gen == 0: fl.wr = []
        putf(base[4]+15, fl)
    if t == 13:
        sl = [(1, 6), (1, 13), (2, 6), (2, 13), (3, 6), (3, 13), (4, 6), (4, 13), (4, 15), (5, 16)]
        for k, (g, rel) in enumerate(sl):
            h, x = divmod(k, 5)
            putf(base[g]+rel-1, f"s_add_u32 m0, s51, {5120*h + (4096 if x == 4 else 0)}")
            if x == 0: putf(base[g]+rel-3, f"s_mov_b32 s55, {16*1280*h}")
            putf(base[g]+rel, dma(PKO+x, SWO, 55, 1024*(x&3), PKREG, ('PK', gen), NT))
    if t == 15:
        putf(base[1]+1, W('vm', need_tag(lambda x: x[2] == ('PK', gen))))
        for k in range(3): putf(base[0]+(0, 8, 10)[k], f"s_add_u32 s{55+k}, s{S_OPA}, {4096*k}")
        dsg = sorted(base[g]+rel for g in range(1, 6) for rel in DSG)
        stg = [base[g]+rel for g in range(1, 6) for rel in (6, 13, 14, 16)] + [base[5]+15]
        stg.sort()
        for nt in range(10):
            d = PKD[nt & 1]
            for h in range(2):
                putf(dsg[2*nt+h], I(f"ds_read_b64_tr_b16 {v(d+2*h,2)}, v{PKT+(nt&1)} offset:{5120*h+64*(nt>>1)}", src=(PKREG, ('PK', gen))))
            cand = [x for x in stg if x >= dsg[2*nt+1] + 4]
            sg = min(cand) if cand else None
            st = [W('lgkm', need_regs(v(d,4))), I(f"buffer_store_dwordx4 {v(d,4)}, v{PKL}, {srd(SWP)}, s{55+nt//4} offen offset:{1024*(nt%4)} sc1", tag=('pst', 0, 0))]
            if sg is None: w.late = getattr(w, 'late', []) + st; continue
            stg.remove(sg); putf(sg, *st)
            assert nt + 2 >= 10 or sg < dsg[2*(nt+2)], (nt, sg)
    dg = [(0, 15), (1, 15), (2, 15), (3, 15)]
    P_ = lambda k: base[dg[k][0]] + dg[k][1]
    if t <= 12:
        L = kv_batch(gen, t+4)
        kg = list(OPT['kg'])
        if short0: kg[0] = (1, 6) if (1, 6) not in kg else (1, 13)
        kg.sort()
        K_ = lambda k: base[kg[k][0]] + kg[k][1]
        fc = [f"s_waitcnt vmcnt({OPT['kvwin']})"] if OPT['kvwin'] else []
        putf(K_(0)-4 if not short0 else K_(0)-2, L[0])
        for k in range(4): putf(K_(k), L[1+k]); putf(K_(k)-1, *fc)
        putf(K_(3)+1, L[5], L[6]) if K_(4) - K_(3) < 4 else (putf(K_(3)+1, L[5]), putf(K_(3)+2, L[6]))
        for k in range(4): putf(K_(4+k), L[7+k]); putf(K_(4+k)-1, *fc)
        putf(K_(7)+1, L[11])
    else:
        s = t - 13
        putf(base[0]+1+7, f"s_add_u32 s{S_WS}, s{S_W0}, {262144*s}") if t != 15 else putf(base[0]+12, f"s_add_u32 s{S_WS}, s{S_W0}, {262144*s}")
        for k in range(4):
            m0, ins = w_piece(gen+1, s, k, S_WS); putf(P_(k)-1, m0); putf(P_(k), ins)
        if t == 14:
            putf(base[0]+10, f"s_mov_b32 s{S_XS}, s{S_X0}"); putf(base[0]+11, f"s_add_u32 s54, s{S_X0}, 30720")
            for k, (g, rel) in enumerate(((1, 6), (2, 6), (3, 6), (3, 13), (4, 6), (4, 14))):
                m0, ins = x_piece(gen+1, 0, k, S_XS if k < 3 else 54); putf(base[g]+rel-1, m0); putf(base[g]+rel, ins)
    if t == 0:
        g0 = w.place([f"v_accvgpr_write_b32 a{OACC(0,5)+k}, 0" for k in range(32)], 1)
    if t in (4, 8, 12) and not OPT.get('nopa'):
        putf(0, "s_movk_i32 s55, 960"); w.place(pack_addr(0), 3)
    if t == 14: w.place(pack_addr(1), 3)
    return w.out() + getattr(w, 'late', [])

def a_drain(gen):
    mf, base = a_iter(gen, 16)
    e, c = softmax_ops(5)
    p = [e[4], e[5], e[6], e[7], c[2], c[3], "s_nop 1"] + mf
    p += [f"s_mov_b32 s52, {OPT['thr']:#x}",
          f"v_add_f32 v{TMPA+1}, v{LREG(0)}, v{LREG(1)}", f"v_add_f32 v{TMPA+2}, v{LREG(2)}, v{LREG(3)}",
          f"v_add_f32 v{TMPA+1}, v{TMPA+1}, v{LREG(4)}", f"v_add_f32 v{TMPA+1}, v{TMPA+1}, v{TMPA+2}", "s_nop 5",
          f"v_add_f32 v{TMPA+1}, v{TMPA+1}, v{LREG(5)}",
          f"v_cmp_nge_f32 vcc, s52, v{TMPA+1}", "s_nop 4", "s_cbranch_vccnz L_slow", "L_slowret:"]
    return p

def slow_path():
    p = ["L_slow:"]; A = p.append
    SK, SV = 80, 64
    A("s_lshl_b32 s52, s7, 21")
    A("s_add_u32 s80, s72, s52"); A("s_addc_u32 s81, s73, 0"); A("s_mov_b32 s82, 131072"); A("s_mov_b32 s83, 0x20000")
    A("s_add_u32 s64, s74, s52"); A("s_addc_u32 s65, s75, 0"); A("s_mov_b32 s66, 131072"); A("s_mov_b32 s67, 0x20000")
    ka, va = TMPA, TMPA + 1
    A(f"v_and_b32 v{ka}, 15, v1"); A(f"v_lshrrev_b32 v{va}, 4, v1")
    A(f"v_lshlrev_b32 v{TMPA+2}, 1, v{ka}")
    A(f"v_lshlrev_b32 v{ka}, 8, v{ka}"); A(f"v_lshl_add_u32 v{ka}, v{va}, 4, v{ka}")
    A(f"v_lshl_add_u32 v{va}, v{va}, 10, v{TMPA+2}")
    for g in range(6): A(f"v_mov_b32 v{V_NEGM+4*g}, 0xff800000")
    def kloads():
        q = []
        for kt in range(2):
            q.append(f"s_add_u32 s53, s52, {4096*kt}")
            for ks in range(4): q.append(f"buffer_load_dwordx4 {v(KF+4*(4*kt+ks),4)}, v{ka}, {srd(SK)}, s53 offen offset:{64*ks}")
        return q
    def schain(g, c0):
        q = []
        for kt in range(2):
            d = v(SB[0]+4*kt, 4)
            for ks in range(4): q.append(M(d, v(KF+4*(4*kt+ks),4), QF(g, ks), c0 if ks == 0 else d))
        return q + ["s_nop 7", "s_nop 3"]
    A("s_mov_b32 s52, 0")
    A("L_slow1:")
    p += kloads(); A("s_waitcnt vmcnt(0)")
    for g in range(6):
        p += schain(g, "0")
        n = V_NEGM + 4*g; s0 = SB[0]
        for k in range(4): A(f"v_max3_f32 v{n}, v{n}, v{s0+2*k}, v{s0+2*k+1}")
    A("s_add_u32 s52, s52, 8192"); A("s_cmp_lg_u32 s52, 131072"); A("s_cbranch_scc1 L_slow1")
    for g in range(6): p += rowmax_bcast(V_NEGM + 4*g)
    for r in range(192): A(f"v_accvgpr_write_b32 a{r}, 0")
    for g in range(6):
        for k in range(4): A(f"v_mov_b32 v{LREG(g)+k}, 0")
    A("s_mov_b32 s52, 0")
    A("L_slow2:")
    p += kloads()
    for t in range(2):
        A(f"s_add_u32 s53, s52, {4096*t}")
        for i in range(8):
            for j in range(4):
                A(f"buffer_load_ushort v{VF[j&1]+4*i+2*t+(j>>1)}, v{va}, {srd(SV)}, s53 offen offset:{256*j+32*i}")
        A("s_waitcnt vmcnt(0)")
    for r in range(32): A(f"v_lshl_or_b32 v{VF[0]+r}, v{VF[1]+r}, 16, v{VF[0]+r}")
    for g in range(6):
        p += schain(g, v(V_NEGM+4*g, 4))
        for k in range(8): A(f"v_exp_f32 v{SB[0]+k}, v{SB[0]+k}")
        A("s_nop 0")
        for k in range(4): A(f"v_cvt_pk_bf16_f32 v{PB[0]+k}, v{SB[0]+2*k}, v{SB[0]+2*k+1}")
        A("s_nop 1")
        for i in range(8):
            d = a(OACC(i, g), 4); A(M(d, v(VF[0]+4*i,4), v(PB[0],4), d))
        d = v(LREG(g), 4); A(M(d, v(V_ONES,4), v(PB[0],4), d))
        A("s_nop 3")
    A("s_add_u32 s52, s52, 8192"); A("s_cmp_lg_u32 s52, 131072"); A("s_cbranch_scc1 L_slow2")
    A("s_nop 7"); A("s_nop 3")
    A("s_branch L_slowret")
    return p

def gen0_end():
    p = []; A = p.append
    for g in range(6): A(f"v_rcp_f32 v{V_RC0+g}, v{LREG(g)}")
    A("s_add_u32 s16, s16, 0x200000"); A("s_addc_u32 s17, s17, 0")
    A("s_mov_b32 s7, 1")
    A("s_mov_b32 s26, 0"); A("s_mov_b32 s62, 0")
    if OPT['nost0']: A(f"s_add_u32 s{S_OS}, s{S_OS}, 0x8000000")
    p += q_addr_setup()
    if OPT['pf1']: p += pf_ahead(3, 8, V_PFW, V_PFX)
    p += stamp()
    return p

OPK = 64
OPB = [184, 208, 232]
V_AO = [8, 9]; V_BO = [10, 11]; HELD = [12, 16, 20, 24, 28, 32, 40, 44, 48, 52, 56]; HELDN = [n for n in range(24) if n % 8 not in (0, 3, 6)]; V_OSV = 60; V_RC1 = 2
def opacc(nt, g): return v(OPK + 4*(nt*6+g), 4) if nt < 5 else a(4*((nt-5)*6+g), 4)
def opA(s, nt): return 120 + 4 * ((10*(s % 3) + nt + 18) % 30)
def ldA(s, nt):
    half, x = divmod(nt, 5)
    return I(f"buffer_load_dwordx4 {a(opA(s,nt),4)}, {v(V_AO[half])}, {srd(SWP)}, s{53 if x < 4 else 54} offen offset:{1024*(x&3)} sc1", tag=('opa', 0, ('OP', s)))
def ldB(s, g):
    return I(f"buffer_load_dwordx4 {v(OPB[s%3]+4*g,4)}, {v(V_BO[g//3])}, {srd(SO)}, s{S_OPB} offen offset:{1024*(g%3)} sc1", tag=('opb', 0, ('OP', s)))

def poll(word_sreg_code, sh, val, tag, va, vd):
    return word_sreg_code + [f"v_mov_b32 v{va}, s52", "s_mov_b32 s55, 0x40000",
            f"L_poll{tag}:",
            f"buffer_load_dword v{vd}, v{va}, {srd(SDBG)}, 0 offen sc1",
            "s_waitcnt vmcnt(0)",
            f"v_readfirstlane_b32 s52, v{vd}", "s_nop 3",
            f"s_lshr_b32 s52, s52, {sh}", "s_and_b32 s52, s52, 0xff",
            f"s_cmp_ge_u32 s52, {val}", f"s_cbranch_scc1 L_pollend{tag}",
            "s_sleep 8", "s_sub_u32 s55, s55, 1", "s_cmp_lg_u32 s55, 0", f"s_cbranch_scc1 L_poll{tag}",
            f"L_pollend{tag}:"]
CLW = [f"s_lshl_b32 s52, s{S_C}, 2"]
BRW = [f"s_lshr_b32 s52, s{S_C}, 4", "s_lshl_b32 s52, s52, 2", "s_add_u32 s52, s52, 128"]
def signal(word, val, va, vd):
    return word + [f"v_mov_b32 v{vd}, {val:#x}", f"v_mov_b32 v{va}, s52", "s_mov_b64 exec, 1",
            f"buffer_atomic_add v{vd}, v{va}, {srd(SDBG)}, 0 offen sc1", "s_mov_b64 exec, -1"]

OUNITS = [(g, sp) for g in (3, 4, 5, 0, 1, 2) for sp in range(4)]
def gen1_end():
    p = ["L_gen1end:"]; A = p.append
    for g in range(6): A(f"v_rcp_f32 v{V_RC1+g}, v{LREG(g)}")
    A("s_cmp_lg_u32 s4, 0"); A("s_cbranch_scc1 L_pollret0")
    A(W('vm', need_tag(lambda t: t[0] == 'flag')))
    A("v_readlane_b32 s52, v0, 0"); A("v_readlane_b32 s53, v0, 1"); A("s_nop 3")
    A("s_and_b32 s52, s52, 0xff"); A("s_cmp_lt_u32 s52, 8"); A("s_cbranch_scc1 L_polla0")
    A("s_cmp_lt_u32 s53, 128"); A("s_cbranch_scc1 L_polla0")
    A("L_pollret0:")
    A("s_barrier")
    A(f"s_add_u32 s{S_OS}, s{S_OS}, {16*24576 - (0x8000000 if OPT['nost0'] else 0)}")
    A("s_lshr_b32 s52, s37, 1"); A("s_mul_i32 s52, s52, 1310720")
    A("s_add_u32 s24, s24, s52"); A("s_addc_u32 s25, s25, 0"); A("s_mov_b32 s26, 1310720")
    if OPT['nowo']: A("s_mov_b32 s26, 0")
    A(f"v_lshlrev_b32 v{V_OSV}, 4, v1")
    A("s_mul_i32 s52, s6, 5120"); A(f"v_add_u32 v{V_AO[0]}, s52, v{V_OSV}")
    A("s_sub_u32 s52, 5120, s52"); A(f"v_add_u32 v{V_AO[1]}, s52, v{V_OSV}")
    A("s_mul_i32 s52, s5, 3072"); A(f"v_add_u32 v{V_BO[0]}, s52, v{V_OSV}")
    A("s_sub_u32 s52, 3072, s52"); A(f"v_add_u32 v{V_BO[1]}, s52, v{V_OSV}")
    A(f"s_mul_i32 s{S_OPA}, s4, 163840")
    A("s_and_b32 s52, s37, 1"); A("s_lshl_b32 s52, s52, 5"); A(f"s_lshl_b32 s{S_OPB}, s4, 2")
    A(f"s_add_u32 s{S_OPB}, s{S_OPB}, s52"); A(f"s_mul_i32 s{S_OPB}, s{S_OPB}, 24576")
    if OPT['noo']: A(f"s_add_u32 s{S_OPB}, s{S_OPB}, 0x8000000")
    def aset(): return [f"s_mov_b32 s53, s{S_OPA}", f"s_add_u32 s54, s{S_OPA}, 4096"]
    p += aset()
    loads = [ldA(0, nt) for nt in range(10)] + [ldB(0, g) for g in range(6)]
    p += loads
    later = [[f"s_add_u32 s{S_OPA}, s{S_OPA}, 10240"] + aset() + [ldA(1, 0)], [ldA(1, 1)],
             [f"s_add_u32 s{S_OPB}, s{S_OPB}, 6144", ldB(1, 0)]] + [[ldB(1, g)] for g in range(1, 6)]
    after345 = [[ldA(1, nt)] for nt in range(2, 10)] + [[f"s_add_u32 s{S_OPA}, s{S_OPA}, 10240"] + aset() + [ldA(2, 0)]] + [[ldA(2, nt)] for nt in range(1, 9)]
    for n, (g, sp) in enumerate(OUNITS):
        if n not in HELDN:
            pk = 80 + 4 * (n % 4)
            p += o_unit(g, sp, V_RC1+g, 64 + 8*(n & 1), pk, V_OSV, 1, pkmul=True) + o_store(g, sp, pk, V_OSV, 1, 56)
        else:
            hk = HELDN.index(n)
            if hk < 11: p += o_unit(g, sp, V_RC1+g, 64 + 8*(n & 1), HELD[hk], V_OSV, 1, pkmul=True)
            else:
                p += o_unit(g, sp, V_RC1+g, 64 + 8*(n & 1), 96, V_OSV, 1, pkmul=True)
                p += [f"v_accvgpr_write_b32 a{240+4*(hk-11)+k}, v{96+k}" for k in range(4)]
        if n < 12:
            if later: p += later.pop(0)
        else:
            for _ in range(2):
                if after345: p += after345.pop(0)
    assert not later and not after345
    A(f"s_mov_b32 s{S_CNT}, 0")
    A(W('vm', need_tag(lambda t: t[2] == ('OP', 0))))
    p += stamp()
    return p

def op_step(s):
    w = Weave(); put = w.put
    for nt in (range(10) if s < 31 else (5, 6, 7, 8, 9, 0, 1, 2, 3, 4)):
        for g in range(6):
            d = opacc(nt, g)
            w.mf.append(M(d, a(opA(s, nt),4), v(OPB[s%3]+4*g,4), "0" if s == 0 else d))
    if s >= 29:
        if s == 29:
            put(0, ldA(31, 9))
            put(14, f"s_add_u32 s{S_OPB}, s{S_OPB}, 6144")
            for g in range(6): put(15 + 6*g, ldB(31, g))
        if s == 30:
            put(2, "v_lshlrev_b32 v8, 4, v1", "s_mul_i32 s52, s4, 30720"); put(4, "v_add_u32 v9, s52, v8")
            put(6, "s_xor_b32 s53, s4, 1"); put(7, "s_mul_i32 s53, s53, 30720"); put(8, "v_add_u32 v10, s53, v8")
        if s < 31: put(59, W('vm', need_tag(lambda t: t[2] == ('OP', s+1))))
        else:
            for k in range(27): put(33 + k, I(f"ds_write_b128 v9, {a(4*k,4)} offset:{1024*k}", tag=('lds', 'RED', 1)))
        return w
    put(0, ldA(s+2, 9))
    put(1, f"s_cmp_eq_u32 s{S_CNT}, 13", f"s_cselect_b32 s55, s76, 10240")
    put(5, f"s_add_u32 s{S_OPA}, s{S_OPA}, s55", f"s_mov_b32 s53, s{S_OPA}")
    for nt in range(9): put(6*(nt+1), ldA(s+3, nt))
    put(7, f"s_add_u32 s54, s{S_OPA}, 4096")
    put(8, f"s_cmp_eq_u32 s{S_CNT}, 14", f"s_cselect_b32 s55, s78, 6144")
    put(14, f"s_add_u32 s{S_OPB}, s{S_OPB}, s55")
    for g in range(6): put(15 + 6*g, ldB(s+2, g))
    if s >= 5 and (s - 5) % 3 == 1:
        put(13, I(f"buffer_load_dword v61, off, {srd(SDBG)}, s79 sc1", tag=('flag', 0, s)))
    put(57, f"s_add_u32 s{S_CNT}, s{S_CNT}, 1")
    put(59, W('vm', need_tag(lambda t: t[2] == ('OP', s+1))))
    return w

def op_first():
    w = Weave()
    for s in range(5): w.extend(op_step(s))
    items = []
    for k, n in enumerate(HELDN):
        items += o_store(*OUNITS[n], HELD[k] if k < 11 else a(240+4*(k-11),4), V_OSV, 1, 56)
    w.place(items, 2, None, mingap=OPT['opgap'])
    pre = [f"s_mov_b32 s76, {(64-16+1)*10240}", "s_mov_b32 s77, 0x10000000", f"s_mov_b32 s78, {(12*4+1)*6144}", "s_mov_b32 s79, s77"]
    return pre + w.out()

def op_final():
    p = []; A = p.append
    p += stamp()
    for k in range(27, 30): A(I(f"ds_write_b128 v9, {a(4*k,4)} offset:{1024*k}", tag=('lds', 'RED', 1)))
    A("s_waitcnt lgkmcnt(0)"); A("s_barrier")
    p += stamp(True)
    T = 184
    def addback(tiles, addr, ver):
        q = []
        n = len(tiles); D = 12
        for k in range(min(D, n)): q.append(I(f"ds_read_b128 {v(T+4*k,4)}, v{addr} offset:{1024*k}", src=('RED', ver)))
        for k in range(n):
            q.append(W('lgkm', need_regs(v(T+4*(k%D),4))))
            for e in range(2): q.append(f"v_pk_add_f32 {v(tiles[k]+2*e,2)}, {v(tiles[k]+2*e,2)}, {v(T+4*(k%D)+2*e,2)}")
            if k + D < n: q.append(I(f"ds_read_b128 {v(T+4*(k%D),4)}, v{addr} offset:{1024*(k+D)}", src=('RED', ver)))
        return q
    give = [OPK+4*(nt*6+g) for nt in range(5) for g in range(3, 6)]
    keep = [OPK+4*(nt*6+g) for nt in range(5) for g in range(3)]
    p += addback([OPK+4*k for k in range(30)], 10, 1)
    p += stamp(True)
    A("s_barrier")
    A("s_xor_b32 s53, s4, 2"); A("s_mul_i32 s53, s53, 30720")
    A("v_add_u32 v10, s53, v8")
    for k, r in enumerate(give): A(I(f"ds_write_b128 v9, {v(r,4)} offset:{1024*k}", tag=('lds', 'RED', 2)))
    A("v_and_b32 v11, 15, v1")
    A("v_mul_u32_u24 v11, 2560, v11")
    A("v_lshrrev_b32 v12, 4, v1")
    A("v_lshl_add_u32 v11, v12, 3, v11")
    A(f"s_mul_i32 s52, s5, {48*2560}")
    A("s_mul_i32 s53, s6, 160")
    A("s_add_u32 s52, s52, s53")
    A("v_add_u32 v11, s52, v11")
    A("v_lshlrev_b32 v13, 3, v12"); A("v_sub_u32 v13, v11, v13")
    A("v_and_b32 v14, 1, v12"); A("v_lshl_add_u32 v13, v14, 5, v13")
    A("v_lshrrev_b32 v14, 1, v12"); A("v_lshl_add_u32 v13, v14, 4, v13")
    A("s_waitcnt lgkmcnt(0)"); A("s_barrier")
    p += stamp(True)
    order = [x*3 + y for y in range(3) for x in range(5)]
    for k in range(15): A(I(f"ds_read_b128 {v(T+4*k,4)}, v10 offset:{1024*order[k]}", src=('RED', 2)))
    for y in range(3):
        A(f"s_mov_b32 s53, {y*16*2560}")
        d = 16 + 12*(y & 1)
        for x in range(5):
            r = OPK + 4*(x*6+y); t_ = T + 4*(5*y+x)
            A(W('lgkm', need_regs(v(t_,4))))
            for e in range(2): A(f"v_pk_add_f32 {v(r+2*e,2)}, {v(r+2*e,2)}, {v(t_+2*e,2)}")
            e = d + 4*(x >> 1) + (x & 1) * 2 if x < 4 else d + 8
            A(f"v_cvt_pk_bf16_f32 v{e}, v{r}, v{r+1}")
            A(f"v_cvt_pk_bf16_f32 v{e+1}, v{r+2}, v{r+3}")
            if x == 2:
                A(f"v_permlane16_swap_b32 v{d}, v{d+2}"); A(f"v_permlane16_swap_b32 v{d+1}, v{d+3}")
                A(f"buffer_store_dwordx4 {v(d,4)}, v13, {srd(SOUT)}, s53 offen offset:0{OPT['outf']}")
        A(f"buffer_store_dwordx2 {v(d+8,2)}, v11, {srd(SOUT)}, s53 offen offset:128{OPT['outf']}")
        A(f"v_permlane16_swap_b32 v{d+4}, v{d+6}"); A(f"v_permlane16_swap_b32 v{d+5}, v{d+7}")
        A(f"buffer_store_dwordx4 {v(d+4,4)}, v13, {srd(SOUT)}, s53 offen offset:64{OPT['outf']}")
    p += stamp()
    return p

def stamp_dump():
    if not OPT['stamps']: return []
    return ["s_load_dwordx2 s[56:57], s[0:1], 96", "s_memrealtime s[52:53]", "s_waitcnt lgkmcnt(0)",
         "s_sub_u32 s52, s52, s68", "s_mov_b32 m0, 63", "s_nop 0", "v_writelane_b32 v39, s52, m0",
         "s_add_u32 s56, s56, 0x4000000", "s_addc_u32 s57, s57, 0", "s_mov_b32 s58, 0x100000", "s_mov_b32 s59, 0x20000",
         "s_lshl_b32 s52, s2, 10", "s_lshl_b32 s53, s4, 8", "s_add_u32 s52, s52, s53", "v_lshlrev_b32 v8, 2, v1", "s_nop 4",
         "buffer_store_dword v39, v8, s[56:59], s52 offen"]

def build():
    P = Prog()
    for nm in ("prologue", "qfirst0", "qtail", "trans", "a0", "aloop", "atail", "gen0end", "qfirst1", "gen1end", "opfirst", "ophdr", "opbody", "opfinal"):
        P.place(nm)
    P.run("prologue", prologue())
    for gen in range(2):
        if gen == 0: P.run("qfirst0", q_pre(0) + q_first(0) + stamp(True))
        else: P.run("qfirst1", q_pre(1) + q_first(1) + stamp(True) + ["s_branch L_qtail"])
        w = Weave()
        for s in range(16, 20): w.extend(q_step(gen, s))
        P.run("qtail", ["L_qtail:"] + w.out())
        P.run("trans", transition(gen))
        P.run("a0", a_tile(gen, 0) + (stamp() if OPT.get('afine') else []))
        for ps in range(3):
            body = ["L_aloop:"]
            for k in range(4): body += a_tile(gen, 1+4*ps+k) + (stamp() if OPT.get('afine') else [])
            body += stamp(True) + [f"s_sub_u32 s{S_CNT}, s{S_CNT}, 1", f"s_cmp_lg_u32 s{S_CNT}, 0", "s_cbranch_scc1 L_aloop"]
            P.run("aloop", body)
        P.run("atail", a_tile(gen, 13) + (stamp() if OPT.get('afine') else []) + a_tile(gen, 14) + (stamp() if OPT.get('afine') else []) + a_tile(gen, 15) + a_drain(gen) + stamp() + ["s_cmp_eq_u32 s7, 1", "s_cbranch_scc1 L_gen1end"])
        if gen == 0: P.run("gen0end", gen0_end())
    P.run("gen1end", gen1_end())
    P.run("opfirst", op_first() + stamp(True))
    for ps in range(8):
        P.run("ophdr", ["L_oploop:", f"s_cmp_eq_u32 s{S_CNT}, 8", "s_cbranch_scc1 L_oppub", f"s_cmp_eq_u32 s{S_CNT}, 11", "s_cbranch_scc1 L_oparm",
                        f"s_cmp_eq_u32 s{S_CNT}, 14", "s_cbranch_scc1 L_oppoll", "L_opbody:"])
        if ps == 1: P.run("oppub_", [W('vm', need_tag(lambda t: t[0] == 'ost')), "s_barrier"])
        if ps == 3: P.run("oppoll_", ["v_readfirstlane_b32 s52, v61"])
        w = Weave()
        for k in range(3): w.extend(op_step(5+3*ps+k))
        P.run("opbody", w.out() + stamp(True) + [f"s_cmp_lg_u32 s{S_CNT}, 29", "s_cbranch_scc1 L_oploop"])
    w = Weave()
    for s in range(29, 32): w.extend(op_step(s))
    P.run("opfinal", w.out() + op_final() + stamp_dump() + ["L_end:", "s_endpgm"])
    return P

def finish(P):
    res = resolve_waits([P.trace])
    npub = min(63, res[("oppub_", 0)])
    P.order.remove("oppub_")
    P.add_static("oppub", ["L_oppub:", f"s_waitcnt vmcnt({npub})", "s_barrier", "s_cmp_eq_u32 s4, 0", "s_cbranch_scc0 L_opbody"]
                 + signal(CLW, 0x100, 62, 63) + ["s_branch L_opbody"])
    P.order.remove("oppoll_")
    P.add_static("oparm", ["L_oparm:", f"s_lshl_b32 s79, s{S_C}, 2", "s_lshl_b32 s52, s4, 28", "s_add_u32 s79, s79, s52", "s_branch L_opbody"])
    P.add_static("oppoll", ["L_oppoll:", "s_mov_b32 s79, s77", "s_cmp_lg_u32 s4, 0", "s_cbranch_scc1 L_pollendb",
                 "v_readfirstlane_b32 s52, v61", "s_nop 3", "s_lshr_b32 s52, s52, 8", "s_and_b32 s52, s52, 0xff",
                 "s_cmp_ge_u32 s52, 8", "s_cbranch_scc1 L_pollendb"] + poll(CLW, 8, 8, "b", 62, 63) + ["s_barrier", "s_branch L_opbody"])
    P.add_static("sig0", ["L_sig0:"] + signal(CLW, 1, 62, 63) + ["s_nop 1"] + signal(BRW, 1, 60, 61) + ["s_branch L_nosig0"])
    P.add_static("polla", ["L_polla0:"] + poll(CLW, 0, 8, "a", 62, 63) + poll(BRW, 0, 128, "c", 62, 63) + ["s_branch L_pollret0"])
    P.add_static("slow", ["L_codeend:"] + slow_path())
    for name, ins in P.trace:
        for k, op in enumerate(ins):
            if op.kind == 'wait' and op.need is not None and res[(name, k)] == 999:
                op.kind = 'pseudo'; op.text = ''; op.states = 0
    errs = check(P.trace, res, private=lambda ver: isinstance(ver, tuple) and ver[0] == 'PK')
    errs += check([("slow", P.static["slow"])], res)
    return res, errs

HEADER = open('concat_heads__mha_block_cached__mha_block_cached__near_ridge.s.ref').read().split("; Override launch")[0]

def text(P, res):
    body = emit(P, res)
    return (HEADER + "; @launch grid=(256,1,1) block=(256,1,1) lds=163840\n"
            '.amdgcn_target "amdgcn-amd-amdhsa--gfx950"\n.text\n'
            f".globl {NAME}\n.p2align 8\n.type {NAME},@function\n{NAME}:\n" + body + "\n"
            '.section .rodata,"a"\n.p2align 6\n'
            f".amdhsa_kernel {NAME}\n  .amdhsa_next_free_vgpr 512\n  .amdhsa_next_free_sgpr 102\n  .amdhsa_accum_offset 256\n"
            "  .amdhsa_group_segment_fixed_size 0\n  .amdhsa_float_denorm_mode_32 3\n  .amdhsa_kernarg_size 104\n  .amdhsa_user_sgpr_count 2\n"
            "  .amdhsa_user_sgpr_kernarg_segment_ptr 1\n  .amdhsa_system_sgpr_workgroup_id_x 1\n.end_amdhsa_kernel\n")

if __name__ == "__main__":
    out = sys.argv[1] if len(sys.argv) > 1 else "k.s"
    for o in sys.argv[2:]:
        k, val = o.split('=', 1); OPT[k] = eval(val)
    PF0 = {2: (9, 10, 11), 3: (12, 13, 14), 4: (15, 16, 17), 5: (18, 19)} if OPT.get('pfmode', 0) == 0 else {s: (s + OPT['pf0'] - 2,) for s in range(2, 22 - OPT['pf0'])}
    P = build()
    res, errs = finish(P)
    import re as _re
    seen = set()
    for e in errs:
        key = _re.sub(r"\('[a-z0-9]+', \d+\)", "", e)
        if key not in seen:
            seen.add(key)
            if len(seen) <= 12: print("ERR", e)
    print(len(errs), "checker errors")
    open(out, "w").write(text(P, res))
```
